```python
import torch

def _softmax(x, axis=-1):
    return torch.softmax(x, dim=axis)
def _gelu(x):
    return torch.nn.functional.gelu(x, approximate="tanh")
def _silu(x):
    return torch.nn.functional.silu(x)
def _sigmoid(x):
    return torch.sigmoid(x)
def _layernorm(x, axis=-1, eps=1e-5):
    m = x.mean(dim=axis, keepdim=True)
    v = x.var(dim=axis, keepdim=True, unbiased=False)
    return (x - m) / torch.sqrt(v + eps)
def _scatter_add(tgt, idx, src, axis=0):
    return tgt.clone().index_add_(axis, idx, src)
def _segment_sum(src, seg, n):
    out = torch.zeros((n,) + src.shape[1:], dtype=src.dtype)
    return out.index_add_(0, seg, src)
def _pad(x, pw):
    flat = tuple(v for pair in reversed(pw) for v in pair)
    return torch.nn.functional.pad(x, flat)

kernel_name = 'recurrent_scan__linear_kernel_hedgehog__glu_gated_glu__prompt'

def setup_inputs():

    _w = (lambda a: (lambda t: t.to(torch.bfloat16) if t.is_floating_point() else t)(torch.as_tensor(a)))
    def _A_setup():
        B, S, D, H = 1, 2048, 1024, 32
        Dh = D // H
        return {
            "x": _w((lambda *s: torch.randn(*s, dtype=torch.bfloat16) * 0.05)(B, S, D)),
            "wqkv": _w((lambda *s: torch.randn(*s, dtype=torch.bfloat16) * 0.2)(D, 3 * D)),
            "w_phi": _w((lambda *s: torch.randn(*s, dtype=torch.bfloat16) * 0.2)(H, Dh, Dh) * (Dh ** -0.5)),
            "wo": _w((lambda *s: torch.randn(*s, dtype=torch.bfloat16) * 0.05)(D, D)),
        }
    _A_in = _A_setup()

    def _B_setup():
        B, S, D, F = 1, 2048, 1024, 3584
        return {
            "x": _w((lambda *s: torch.randn(*s, dtype=torch.bfloat16) * 0.05)(B, S, D)),
            "w_gate": _w((lambda *s: torch.randn(*s, dtype=torch.bfloat16) * 0.05)(D, F)),
            "w_up": _w((lambda *s: torch.randn(*s, dtype=torch.bfloat16) * 0.05)(D, F)),
            "w_down": _w((lambda *s: torch.randn(*s, dtype=torch.bfloat16) * 0.05)(F, D)),
        }
    _B_in = _B_setup()

    return {
        "A_x": _A_in["x"],
        "A_wqkv": _A_in["wqkv"],
        "A_w_phi": _A_in["w_phi"],
        "A_wo": _A_in["wo"],
        "B_x": _B_in["x"],
        "B_w_gate": _B_in["w_gate"],
        "B_w_up": _B_in["w_up"],
        "B_w_down": _B_in["w_down"],
    }

def reference(A_x, A_wqkv, A_w_phi, A_wo, B_x, B_w_gate, B_w_up, B_w_down):
    def _A_ref(x, wqkv, w_phi, wo):
        B, S, D = x.shape
        H = 32; Dh = D // H
        qkv = (lambda x, *d: x.permute(*d))((x @ wqkv).reshape(B, S, 3, H, Dh), 2, 0, 3, 1, 4)
        q, k, v = qkv[0], qkv[1], qkv[2]
        pq = torch.einsum("bhsd,hdf->bhsf", q, w_phi)
        pk = torch.einsum("bhsd,hdf->bhsf", k, w_phi)
        phi_q = torch.concatenate([_softmax(pq, axis=-1), _softmax(-pq, axis=-1)], axis=-1)
        phi_k = torch.concatenate([_softmax(pk, axis=-1), _softmax(-pk, axis=-1)], axis=-1)
        kv = torch.einsum("bhsf,bhsd->bhfd", phi_k, v)
        z  = torch.einsum("bhsf->bhf", phi_k)
        num = torch.einsum("bhqf,bhfd->bhqd", phi_q, kv)
        den = torch.einsum("bhqf,bhf->bhq", phi_q, z)[..., None] + 1e-6
        o = num / den
        return (lambda x, *d: x.permute(*d))(o, 0, 2, 1, 3).reshape(B, S, D) @ wo

    def _B_ref(x, w_gate, w_up, w_down):
        g = torch.einsum("bsd,df->bsf", x, w_gate)
        u = torch.einsum("bsd,df->bsf", x, w_up)
        h = _sigmoid(g) * u
        return torch.einsum("bsf,fd->bsd", h, w_down)

    x = A_x
    xn = _layernorm(x, axis=-1)
    s = _A_ref(xn, A_wqkv, A_w_phi, A_wo)
    g = _silu(_B_ref(xn, B_w_gate, B_w_up, B_w_down))
    return x + s * g
```

```python
import re

TRANS = ("v_exp_f32", "v_log_f32", "v_rcp_f32", "v_rsq_f32", "v_sqrt_f32", "v_sin_f32", "v_cos_f32")
_REG = re.compile(r"^(-|abs\()?([vas])(\d+)\)?$")
_RNG = re.compile(r"^(-)?([vas])\[(\d+):(\d+)\]$")

def regs_of(tok):
    tok = tok.strip()
    if tok in ("vcc",): return {("s", "vcc")}
    if tok == "m0": return {("s", "m0")}
    if tok == "exec": return {("s", "exec")}
    m = _REG.match(tok)
    if m: return {(m.group(2), int(m.group(3)))}
    m = _RNG.match(tok)
    if m: return {(m.group(2), i) for i in range(int(m.group(3)), int(m.group(4)) + 1)}
    return set()

class Ins:
    def __init__(self, text):
        self.text = text
        t = text.split(";")[0].strip()
        self.label = t.endswith(":") or t.startswith(".") or t == ""
        self.rd = set(); self.wr = set(); self.kind = "other"; self.srcc = set(); self.srcab = set()
        self.states = 0 if self.label else 1
        if self.label:
            self.op = ""; return
        parts = t.split(None, 1)
        op = parts[0]; self.op = op
        rest = parts[1] if len(parts) > 1 else ""
        ops = []; depth = 0; cur = ""
        for ch in rest:
            if ch in "[(": depth += 1
            if ch in "])": depth -= 1
            if ch == "," and depth == 0: ops.append(cur.strip()); cur = ""
            else: cur += ch
        if cur.strip(): ops.append(cur.strip())
        mods = ""
        if ops:
            last = ops[-1].split(None, 1)
            ops[-1] = last[0]
            mods = last[1] if len(last) > 1 else ""
        self.ops = ops; self.mods = mods
        R = [regs_of(o) for o in ops]
        if op == "s_nop":
            self.states = int(ops[0], 0) + 1; self.kind = "salu"
        elif op.startswith("v_mfma"):
            self.kind = "mfma"; self.wr = R[0]; self.srcab = R[1] | R[2]; self.srcc = R[3]; self.rd = self.srcab | self.srcc
            self.passes = 4 if "16x16x32" in op else 8
        elif op.startswith("v_"):
            self.kind = "valu"
            self.wr = set(R[0]);
            for r in R[1:]: self.rd |= r
            if op.startswith("v_permlane") and "swap" in op:
                self.wr |= R[1]; self.rd |= R[0]
            if op.startswith("v_fmac") or op.startswith("v_dot2c") or op.startswith("v_pk_fmac") or "dpp" in op or op.startswith("v_writelane"):
                self.rd |= R[0]
            if op.startswith(("v_add_co", "v_sub_co", "v_addc_co", "v_subb_co", "v_subrev_co")):
                self.wr |= R[1]; self.rd = set().union(*R[2:])
            if op.startswith("v_cndmask") and len(ops) == 3: self.rd |= {("s", "vcc")}
        elif op.startswith("ds_read") or op.startswith("ds_bpermute") or op.startswith("ds_swizzle"):
            self.kind = "ds"; self.wr = R[0]
            for r in R[1:]: self.rd |= r
        elif op.startswith("ds_"):
            self.kind = "ds"
            for r in R: self.rd |= r
        elif op.startswith(("buffer_load", "global_load")):
            self.kind = "vmem"
            if "lds" in mods.split() or "_lds_" in op:
                for r in R: self.rd |= r
                self.rd |= {("s", "m0")}; self.dma = True
            else:
                self.wr = R[0]
                for r in R[1:]: self.rd |= r
        elif op.startswith(("buffer_store", "global_store", "buffer_atomic", "global_atomic")):
            self.kind = "vmem"
            for r in R: self.rd |= r
            if "atomic" in op and "sc0" in mods.split(): self.wr = R[0]
            if op.endswith(("x3", "x4")):
                self.widedata = R[0] if op.startswith("buffer") else R[1]
        elif op.startswith(("buffer_wbl2", "buffer_inv")):
            self.kind = "vmem"
        elif op.startswith("s_"):
            self.kind = "salu"
            if op.startswith(("s_cmp", "s_cbranch", "s_branch", "s_waitcnt", "s_barrier", "s_endpgm", "s_sleep", "s_setprio", "s_bitcmp", "s_setreg")):
                for r in R: self.rd |= r
            else:
                self.wr = set(R[0]) if R else set()
                for r in R[1:]: self.rd |= r
                if "saveexec" in op: self.wr |= {("s", "exec")}
        else:
            raise ValueError("unknown op " + text)

def need(prev, cur):
    n = 0
    vec = lambda S: {r for r in S if r[0] in "va"}
    sca = lambda S: {r for r in S if r[0] == "s"}
    if prev.kind == "valu":
        wv = vec(prev.wr); ws = sca(prev.wr)
        if cur.kind == "mfma" and wv & cur.rd: n = max(n, 2)
        if prev.op.replace("_e64", "").replace("_e32", "") in TRANS and wv & cur.rd: n = max(n, 1)
        if cur.kind == "valu":
            if (cur.op.startswith("v_permlane") or "dpp" in cur.op) and wv & cur.rd: n = max(n, 2)
            if cur.op.startswith(("v_readlane", "v_readfirstlane")) and wv & cur.rd: n = max(n, 1)
            if ws & cur.rd: n = max(n, 4 if cur.op.startswith(("v_readlane", "v_writelane")) else 2)
            if "sdwa" in prev.op and wv & (cur.rd | cur.wr): n = max(n, 1)
        if cur.kind == "vmem" and ws & cur.rd: n = max(n, 5)
        if cur.kind == "salu" and ws & cur.rd: n = max(n, 1)
    if prev.kind == "mfma":
        p = prev.passes
        raw = {4: 8, 8: 12}[p]; ovl = {4: 6, 8: 10}[p]; war = {4: 3, 8: 7}[p]
        if cur.kind == "mfma":
            if prev.wr & cur.srcab: n = max(n, raw)
            if prev.wr & cur.srcc and not (prev.wr == cur.srcc and prev.passes == cur.passes): n = max(n, ovl)
            if prev.wr & cur.wr and not (prev.wr == cur.srcc and prev.passes == cur.passes): n = max(n, ovl)
        elif cur.kind in ("valu", "vmem", "ds"):
            if prev.wr & (cur.rd | cur.wr): n = max(n, raw)
            if cur.kind == "valu" and prev.srcc & cur.wr: n = max(n, war)
    if prev.kind == "salu" and ("s", "m0") in prev.wr and getattr(cur, "dma", False): n = max(n, 1)
    if hasattr(prev, "widedata") and prev.widedata & cur.wr:
        n = max(n, 2 if cur.kind in ("valu", "mfma") else 1)
    return n

class Asm:
    def __init__(self):
        self.L = []
    def __call__(self, *texts):
        for t in texts:
            for line in t.split("\n"):
                line = line.strip()
                if line: self.L.append(line)
    def extend(self, lst):
        for t in lst: self(t)
    def finish(self, report=False):
        out = []; hist = []
        nn = 0
        for text in self.L:
            ins = Ins(text)
            if not ins.label:
                req = 0; dist = 0
                for p in reversed(hist):
                    r = need(p, ins)
                    if r > dist: req = max(req, r - dist)
                    dist += p.states
                    if dist >= 20: break
                if req > 0:
                    nop = Ins(f"s_nop {req-1}")
                    out.append(nop.text); hist.append(nop); nn += req
                hist.append(ins)
                if len(hist) > 40: hist = hist[-30:]
            out.append(text)
        self.nops = nn
        return "\n".join(("" if (l.endswith(":") or l.startswith(".") or l.startswith(";")) else "    ") + l for l in out) + "\n"

def v(i, n=1): return f"v{i}" if n == 1 else f"v[{i}:{i+n-1}]"
def a(i, n=1): return f"a{i}" if n == 1 else f"a[{i}:{i+n-1}]"
def s(i, n=1): return f"s{i}" if n == 1 else f"s[{i}:{i+n-1}]"
```

```python
import sys, os
sys.path.insert(0, os.path.dirname(os.path.abspath(__file__)))
from asmlib import Asm, v, a, s

NAME = "recurrent_scan__linear_kernel_hedgehog__glu_gated_glu__prompt"
KA_X, KA_WQKV, KA_WPHI, KA_WO, KA_BX, KA_WG, KA_WU, KA_WD, KA_OUT, KA_DBG, KA_WS = [8*i for i in range(11)]
MB = 1 << 20
WS_XN = 0
WS_ACT = 4*MB
ACT_GRP = 72*8192
WS_KVP = 24*MB
WS_ZP = 27*MB
WS_FLAG = 28*MB
FLAG_BYTES = (64 + 256)*128
WS_PART = 32*MB
LOG2E = 0x3FB8AA3B
NLOG2E = 0xBFB8AA3B

def srd(A, d, lo, hi, nrec):
    A(f"s_mov_b32 s{d}, {lo}", f"s_mov_b32 s{d+1}, {hi}", f"s_mov_b32 s{d+2}, {nrec}", f"s_mov_b32 s{d+3}, 0x20000")

def srd_off(A, d, base, off, nrec):
    A(f"s_add_u32 s{d}, s{base}, {off}", f"s_addc_u32 s{d+1}, s{base+1}, 0", f"s_mov_b32 s{d+2}, {nrec}", f"s_mov_b32 s{d+3}, 0x20000")

def header(A, name):
    A(".text", f".globl {name}", ".p2align 8", f".type {name},@function", f"{name}:")

def descriptor(name, vgpr, accum, sgpr=102):
    return f""".section .rodata,"a"
.p2align 6
.amdhsa_kernel {name}
  .amdhsa_next_free_vgpr {vgpr}
  .amdhsa_next_free_sgpr {sgpr}
  .amdhsa_accum_offset {accum}
  .amdhsa_group_segment_fixed_size 0
  .amdhsa_kernarg_size 88
  .amdhsa_user_sgpr_count 2
  .amdhsa_user_sgpr_kernarg_segment_ptr 1
  .amdhsa_system_sgpr_workgroup_id_x 1
  .amdhsa_float_denorm_mode_32 3
.end_amdhsa_kernel
"""

def xlane_reduce(A, groups, op, post):
    for ra, rb in groups: A(f"v_permlane32_swap_b32 v{ra}, v{ra+1}", f"v_permlane32_swap_b32 v{rb}, v{rb+1}")
    for ra, rb in groups: A(f"{op} v{ra}, v{ra}, v{ra+1}", f"{op} v{rb}, v{rb}, v{rb+1}")
    for ra, rb in groups: A(f"v_permlane16_swap_b32 v{ra}, v{rb}")
    for ra, rb in groups: A(f"{op} v{ra}, v{ra}, v{rb}")
    for ra, rb in groups: A(post(ra))
    for ra, rb in groups: A(f"v_mov_b32 v{rb}, v{ra}")
    for ra, rb in groups: A(f"v_permlane16_swap_b32 v{ra}, v{rb}")
    for ra, rb in groups: A(f"v_mov_b32 v{ra+1}, v{ra}", f"v_mov_b32 v{rb+1}, v{rb}")
    for ra, rb in groups: A(f"v_permlane32_swap_b32 v{ra}, v{ra+1}", f"v_permlane32_swap_b32 v{rb}, v{rb+1}")

def snake(t, nj=4):
    seq = []
    js = range(nj) if t % 2 == 0 else range(nj-1, -1, -1)
    for n, j in enumerate(js):
        for kk in ((0, 1) if n % 2 == 0 else (1, 0)): seq.append((j, kk))
    return seq

def glu_blocks(A, blocks, s_nl, store):
    for g0, g1, u0, u1, key in blocks:
        for r in (g0, g0+2, g1, g1+2): A(f"v_pk_mul_f32 v[{r}:{r+1}], v[{r}:{r+1}], s[{s_nl}:{s_nl+1}] op_sel_hi:[1,0]")
        for q in (g0, g1):
            for r in range(4): A(f"v_exp_f32 v{q+r}, v{q+r}")
        for r in (g0, g0+2, g1, g1+2): A(f"v_pk_add_f32 v[{r}:{r+1}], v[{r}:{r+1}], 1.0 op_sel_hi:[1,0]")
        for q in (g0, g1):
            for r in range(4): A(f"v_rcp_f32 v{q+r}, v{q+r}")
        for r, u in ((g0, u0), (g0+2, u0+2), (g1, u1), (g1+2, u1+2)): A(f"v_pk_mul_f32 v[{r}:{r+1}], v[{r}:{r+1}], v[{u}:{u+1}]")
        A(f"v_cvt_pk_bf16_f32 v{u0}, v{g0}, v{g0+1}", f"v_cvt_pk_bf16_f32 v{u0+1}, v{g0+2}, v{g0+3}",
          f"v_cvt_pk_bf16_f32 v{u0+2}, v{g1}, v{g1+1}", f"v_cvt_pk_bf16_f32 v{u0+3}, v{g1+2}, v{g1+3}")
        store(key, u0)

def pack2(A, dst, q0, q1):
    A(f"v_cvt_pk_bf16_f32 v{dst}, v{q0}, v{q0+1}", f"v_cvt_pk_bf16_f32 v{dst+1}, v{q0+2}, v{q0+3}",
      f"v_cvt_pk_bf16_f32 v{dst+2}, v{q1}, v{q1+1}", f"v_cvt_pk_bf16_f32 v{dst+3}, v{q1+2}, v{q1+3}")


class VM:
    def __init__(self, A):
        self.A = A; self.ops = []
    def issue(self, text, tag):
        self.A(text); self.ops.append(tag)
    def count_after(self, tags):
        if not isinstance(tags, list): tags = [tags]
        last = -1
        for i, t in enumerate(self.ops):
            if t in tags: last = i
        assert last >= 0, tags
        return len(self.ops) - 1 - last
    def wait(self, tags):
        n = min(self.count_after(tags), 63)
        return f"s_waitcnt vmcnt({n})"

def poll(A, label, vd, vaddr, R, stmp):
    A(f"s_mov_b32 s{stmp}, 0x40000", f"{label}:")
    A(f"buffer_load_dword v{vd}, v{vaddr}, s[{R}:{R+3}], 0 offen sc1", f"s_sub_u32 s{stmp}, s{stmp}, 1", f"s_cbranch_scc1 {label}_out",
      "s_waitcnt vmcnt(0)", f"v_cmp_ne_u32 vcc, 1, v{vd}", f"s_cbranch_vccnz {label}", f"{label}_out:")

WS_PROF = 200*MB
PROF = os.environ.get("PROF", "0") == "1"
def stamp(A, k):
    if PROF: A("s_memrealtime s[100:101]", "s_waitcnt lgkmcnt(0)", f"s_mov_b32 s{92+k}, s100")
def prof_out(A, kern, wsreg, sw):
    if not PROF: return
    A("s_mov_b64 exec, 1")
    A(f"s_lshl_b32 s100, s2, 2", f"s_add_u32 s100, s100, {sw}", "s_lshl_b32 s100, s100, 5", f"s_add_u32 s100, s100, {WS_PROF + kern*32768}")
    srd_off(A, 20, wsreg, "s100", 32)
    for i in range(8): A(f"v_mov_b32 v{4+i}, s{92+i}")
    A("v_mov_b32 v2, 0", "buffer_store_dwordx4 v[4:7], v2, s[20:23], 0 offen", "buffer_store_dwordx4 v[8:11], v2, s[20:23], 0 offen offset:16")
```

```python
import sys, os
sys.path.insert(0, os.path.dirname(os.path.abspath(__file__)))
from common import *

ST = 40960; WREG = 10240
PG = 7168; PQ = 6144; SZG = 1024*PG; SZQ = 1024*PQ
F_X, F_H, F_O, F_KV, F_P, F_GEN, F_SIZE = 0, 4096, 8192, 12288, 20480, 65536, 65536+128

AG_TILES = (2, 3, 4, 5, 6, 7)
V_TILES = [t for t in range(20) if t not in AG_TILES]
def accr(t, j):
    if t in AG_TILES: return ('a', (AG_TILES.index(t)*4 + j)*4)
    return ('v', 32 + (V_TILES.index(t)*4 + j)*4)
def acc(t, j):
    k, b = accr(t, j); return f"{k}[{b}:{b+3}]"
def vq(t, j):
    k, b = accr(t, j); assert k == 'v'; return b
def aq(t, j):
    k, b = accr(t, j); assert k == 'a'; return b
def xr(slot, j, kk): b = 96 + slot*32 + (j*2+kk)*4; return f"a[{b}:{b+3}]"
def ar(t, kk, h=None, n=4):
    b = 192 + (t % n)*8 + kk*4
    return f"a[{b}:{b+3}]" if h is None else f"a[{b+2*h}:{b+2*h+1}]"
def wphi(head, par): b = 224 + (head*2+par)*4; return f"a[{b}:{b+3}]"
def q4(k, b): return f"{k}[{b}:{b+3}]"

S_W, S_MB, S_P, S_TYPE, S_KS, S_TAG, S_WR = 3, 14, 15, 16, 17, 18, 19
R_X, R_W, R_ACT, R_KVP, R_FLAG, R_WD, R_WDQ = 20, 24, 44, 48, 52, 56, 60
R_ZP, R_PS, R_XR, R_OUT, R_WO = 20, 24, 28, 32, 36
S_O01, S_O23, S_O4, S_I23, S_I4, S_OX, S_LW, S_CNT, S_RD, S_DL, S_PST, S_NST = range(64, 76)
S_NL = 76; S_ACTB = 78; S_TQ = 80; S_TW0 = 94; S_TW1 = 95
S_GL = 64
V_L, V_L16, V_J, V_W, V_RD, V_W2, V_TAG = 1, 2, 3, 7, 13, 17, 21
V_RD2 = 7
V_OUT = 15
def acc2(t, j): return 32 + (t*4 + j)*4
FR = 160
def sacc(t): return 160 + 4*t
PL = 192; XR = 240
RING = (96, 128, 160, 0, 32)
NS1, NS2 = 14, 16; NT = NS1 + NS2

def stamp(A, k):
    if PROF: A("s_memrealtime s[100:101]", "s_waitcnt lgkmcnt(0)", f"v_writelane_b32 v31, s100, {k}")

def glu(A, blocks, store):
    for g0, g1, u0, u1, dst, key in blocks:
        for r in (g0, g0+2, g1, g1+2): A(f"v_pk_mul_f32 v[{r}:{r+1}], v[{r}:{r+1}], s[{S_NL}:{S_NL+1}] op_sel_hi:[1,0]")
        for q in (g0, g1):
            for r in range(4): A(f"v_exp_f32 v{q+r}, v{q+r}")
        for r in (g0, g0+2, g1, g1+2): A(f"v_pk_add_f32 v[{r}:{r+1}], v[{r}:{r+1}], 1.0 op_sel_hi:[1,0]")
        for q in (g0, g1):
            for r in range(4): A(f"v_rcp_f32 v{q+r}, v{q+r}")
        for r, u in ((g0, u0), (g0+2, u0+2), (g1, u1), (g1+2, u1+2)): A(f"v_pk_mul_f32 v[{r}:{r+1}], v[{r}:{r+1}], v[{u}:{u+1}]")
        pack2(A, dst, g0, g1)
        store(key, dst)

def gen(cfg=None):
    C = dict(q_pollq=1, q_kv=2, q_sum1=3, q_o=4, q_pollkv=4, ovl=10, flag_stage=18, poll_stage=24, WD=7, cpf=1, osc=0)
    if cfg: C.update(cfg)
    A = Asm(); name = NAME + "_kernel"
    header(A, name)
    A("s_cmp_ge_u32 s2, 256", "s_cbranch_scc1 L_end")
    if C["cpf"]:
        A("s_getpc_b64 s[20:21]", "L_pc:", "s_mov_b32 s22, L_end-L_pc", "s_mov_b32 s23, 0x20000", "s_bfe_u32 s8, s2, 0x30003", "s_lshl_b32 s8, s8, 14",
          "v_lshlrev_b32 v3, 6, v0", "buffer_load_dword v4, v3, s[20:23], s8 offen")
    stamp(A, 0)
    A(f"s_load_dwordx2 s[4:5], s[0:1], {KA_X}", f"s_load_dwordx2 s[12:13], s[0:1], {KA_WS}", f"s_load_dwordx4 s[96:99], s[0:1], {KA_WQKV}",
      f"s_load_dwordx8 s[80:87], s[0:1], {KA_WG}", f"s_load_dwordx2 s[6:7], s[0:1], {KA_WO}")
    A("v_lshrrev_b32 v2, 6, v0", "v_and_b32 v1, 63, v0", f"v_readfirstlane_b32 s{S_W}, v2")
    A(f"s_bfe_u32 s{S_KS}, s2, 0x20001", "s_bfe_u32 s8, s2, 0x30003", f"s_lshl_b32 s9, s{S_KS}, 3", "s_add_u32 s9, s9, s8",
      f"s_and_b32 s{S_MB}, s2, 1", f"s_lshl_b32 s{S_MB}, s{S_MB}, 2", "s_lshr_b32 s79, s2, 6", f"s_add_u32 s{S_MB}, s{S_MB}, s79",
      f"s_lshr_b32 s{S_P}, s9, 1", f"s_and_b32 s{S_TYPE}, s9, 1")
    B = 64
    def L(r): return B + r
    A(f"v_and_b32 v{L(1)}, 7, v0", f"v_bfe_u32 v{L(2)}, v0, 3, 3")
    A(f"v_lshlrev_b32 v{L(4)}, 11, v{L(1)}", f"v_lshl_add_u32 v{L(4)}, v2, 9, v{L(4)}", f"v_lshl_add_u32 v{L(4)}, v{L(2)}, 4, v{L(4)}")
    A(f"s_lshl_b32 s79, s{S_MB}, 5", "s_add_u32 s79, s79, s9")
    A("s_lshl_b32 s88, s79, 14")
    A("s_waitcnt lgkmcnt(0)")
    srd(A, R_ACT, "s4", "s5", 4*MB)
    for i in range(4): A(f"buffer_load_dwordx4 v[{L(8+4*i)}:{L(11+4*i)}], v{L(4)}, s[{R_ACT}:{R_ACT+3}], s88 offen offset:{i*128}")
    srd_off(A, R_FLAG, 12, WS_FLAG, F_SIZE)
    A(f"s_load_dword s{S_TAG}, s[{R_FLAG}:{R_FLAG+1}], {F_GEN}")
    A(f"v_lshlrev_b32 v{L(5)}, 15, v2", f"v_lshl_add_u32 v{L(5)}, v{L(1)}, 4, v{L(5)}", f"v_lshrrev_b32 v{L(6)}, 2, v{L(2)}", f"v_lshl_add_u32 v{L(5)}, v{L(6)}, 10, v{L(5)}",
      f"v_and_b32 v{L(6)}, 3, v{L(2)}", f"v_lshl_add_u32 v{L(5)}, v{L(6)}, 8, v{L(5)}")
    A(f"v_lshlrev_b32 v{L(7)}, 3, v{L(1)}", f"v_add_u32 v{L(7)}, {3*ST+4096}, v{L(7)}", f"v_lshl_add_u32 v{L(6)}, v2, 6, v{L(7)}")
    A("v_bfe_u32 v22, v1, 4, 1", "v_and_b32 v23, 3, v1",
      "v_lshlrev_b32 v24, 1, v22", "v_xor_b32 v24, v24, v23", "v_lshlrev_b32 v24, 4, v24",
      "v_bfe_u32 v25, v1, 2, 2", "v_lshl_add_u32 v26, v22, 3, v25", "v_lshrrev_b32 v27, 4, v1", "v_lshl_add_u32 v28, v27, 3, v25",
      "v_lshrrev_b32 v29, 5, v1", "v_lshl_add_u32 v29, v29, 6, v24")
    A(f"s_lshr_b32 s89, s{S_W}, 1", "s_lshl_b32 s89, s89, 2", f"s_and_b32 s90, s{S_W}, 1", "s_lshl_b32 s88, s90, 4", "s_add_u32 s88, s88, s89")
    A("v_add_u32 v26, s88, v26", "v_add_u32 v28, s89, v28")
    A(f"s_cmp_eq_u32 s{S_TYPE}, 0", f"s_mov_b32 s91, {PG}", f"s_cselect_b32 s88, s91, {PQ}", f"s_cselect_b32 s89, {PQ}, s91")
    A(f"v_mul_lo_u32 v{V_W}, v26, s91", f"v_mul_lo_u32 v{V_W+2}, v26, s88", f"v_mul_lo_u32 v{V_W+4}, v28, s89")
    A(f"v_add_u32 v{V_W}, v{V_W}, v29", f"v_add_u32 v{V_W+2}, v{V_W+2}, v29", f"v_add_u32 v{V_W+4}, v{V_W+4}, v24")
    A(f"s_lshl_b32 s{S_I23}, s88, 6", f"s_lshl_b32 s{S_I4}, s89, 6")
    A("s_lshl_b32 s88, s88, 5", "s_sub_u32 s88, s88, 1024", "s_lshl_b32 s89, s89, 5", "s_sub_u32 s89, s89, 1024")
    A(f"v_add_u32 v{V_W+1}, {32*PG-1024}, v{V_W}", f"v_add_u32 v{V_W+3}, s88, v{V_W+2}", f"v_add_u32 v{V_W+5}, s89, v{V_W+4}")
    A("v_lshlrev_b32 v2, 4, v1")
    A(f"s_mul_i32 s91, s{S_P}, 448")
    A(f"s_bitcmp0_b32 s{S_P}, 0", "s_cselect_b32 s88, 0, 192", "s_cselect_b32 s89, 256, 64", "s_cselect_b32 s92, 384, 0")
    A(f"s_cmp_eq_u32 s{S_TYPE}, 0", "s_cselect_b32 s88, s88, s89", "s_add_u32 s88, s88, s91", "s_add_u32 s92, s92, s91")
    A(f"s_lshl_b32 s91, s{S_P}, 7")
    def wsrd(d, lo, hi, off, size, comp):
        A(f"s_sub_u32 s10, {off}, {comp}" if comp else f"s_mov_b32 s10, {off}")
        A(f"s_ashr_i32 s11, s10, 31", f"s_add_u32 s{d}, {lo}, s10", f"s_addc_u32 s{d+1}, {hi}, s11", f"s_sub_u32 s{d+2}, {size}, s10", f"s_mov_b32 s{d+3}, 0x20000")
    wsrd(R_W, "s80", "s81", "s88", SZG, 0)
    wsrd(R_W+4, "s82", "s83", "s88", SZG, 2048)
    A(f"s_cmp_eq_u32 s{S_TYPE}, 0", "s_cbranch_scc0 L_srd_kv")
    A("s_add_u32 s89, s88, 128")
    wsrd(R_W+8, "s80", "s81", "s89", SZG, 0)
    wsrd(R_W+12, "s82", "s83", "s89", SZG, 2048)
    A("s_lshl_b32 s89, s90, 6", "s_add_u32 s89, s89, s91")
    wsrd(R_W+16, "s96", "s97", "s89", SZQ, 0)
    A(f"s_lshl_b32 s{S_ACTB}, s88, 6", f"s_add_u32 s{S_ACTB}, s{S_ACTB}, 8192")
    A("s_branch L_srd_done")
    A("L_srd_kv:")
    A("s_add_u32 s89, s91, 2048")
    wsrd(R_W+8, "s96", "s97", "s89", SZQ, 0)
    A("s_add_u32 s89, s91, 4096")
    wsrd(R_W+12, "s96", "s97", "s89", SZQ, 2048)
    A("s_cmp_eq_u32 s90, 0", "s_cselect_b32 s94, s80, s82", "s_cselect_b32 s95, s81, s83")
    wsrd(R_W+16, "s94", "s95", "s92", SZG, 0)
    A(f"s_lshr_b32 s{S_ACTB}, s92, 7", f"s_lshl_b32 s{S_ACTB}, s{S_ACTB}, 13", "s_bfe_u32 s89, s92, 0x10006", "s_lshl_b32 s89, s89, 10", f"s_add_u32 s{S_ACTB}, s{S_ACTB}, s89")
    A("L_srd_done:")
    A(f"s_mul_i32 s{S_WR}, s{S_W}, {WREG}", f"s_mov_b32 s{S_LW}, s{S_WR}")
    for r in (S_O01, S_O23, S_O4, S_OX): A(f"s_mov_b32 s{r}, 0")
    def dma_list():
        o = []
        for p in range(10):
            sl, kk = p >> 1, p & 1
            grp = (0, 0, 1, 1, 2)[sl]
            pre = [f"s_add_u32 m0, s{S_LW}, {(p >> 2)*4096}"] if p % 4 == 0 else []
            if p == 0: pre = [f"s_mov_b32 m0, s{S_LW}"]
            o.append((pre, f"buffer_load_dwordx4 v{V_W+grp*2+kk}, s[{R_W+4*sl}:{R_W+4*sl+3}], s{S_O01+grp} offen offset:{(p & 3)*1024} lds"))
        return o
    def dma_post():
        return [f"s_add_u32 s{S_O01}, s{S_O01}, {64*PG}", f"s_add_u32 s{S_O23}, s{S_O23}, s{S_I23}", f"s_add_u32 s{S_O4}, s{S_O4}, s{S_I4}",
                f"s_add_u32 s{S_LW}, s{S_LW}, {ST}", f"s_sub_u32 s10, s{S_LW}, {4*ST}", f"s_cmp_ge_u32 s{S_LW}, {4*ST}", f"s_cselect_b32 s{S_LW}, s10, s{S_LW}"]
    def emit_dma():
        for pre, ins in dma_list(): A(*pre); A(ins)
        A(*dma_post())
    emit_dma()
    A(f"s_lshl_b32 s89, s{S_P}, 12")
    srd_off(A, R_WDQ, 98, "s89", 4096)
    A(f"s_lshl_b32 s89, s{S_W}, 10", f"s_add_u32 m0, s89, {3*ST}")
    A(f"buffer_load_dwordx4 v2, s[{R_WDQ}:{R_WDQ+3}], s89 offen lds")
    emit_dma()
    srd_off(A, R_KVP, 12, WS_XN, 4*MB)
    A("s_lshr_b32 s88, s79, 3", "s_lshl_b32 s88, s88, 17", "s_bfe_u32 s89, s79, 0x20001", "s_lshl_b32 s89, s89, 11", "s_add_u32 s88, s88, s89",
      "s_and_b32 s89, s79, 1", "s_lshl_b32 s89, s89, 7", "s_add_u32 s88, s88, s89")
    A("s_mov_b32 s89, 0xffff0000")
    for i in range(4):
        A(f"s_waitcnt vmcnt({21+3-i})")
        for q in range(4):
            r = L(8 + 4*i + q); d = L(32 + 8*i + 2*q)
            A(f"v_lshlrev_b32 v{d}, 16, v{r}", f"v_and_b32 v{d+1}, s89, v{r}")
    stamp(A, 1)
    def p2(r): return f"v[{L(r)}:{L(r)+1}]"
    def red8(r, t):
        r = L(r); t = L(t)
        A(f"v_add_f32_dpp v{r}, v{r}, v{r} row_ror:8 row_mask:0xf bank_mask:0xf")
        A(f"v_mov_b32 v{t}, v{r}", f"v_permlane16_swap_b32 v{r}, v{t}", f"v_add_f32 v{r}, v{r}, v{t}")
        A(f"v_mov_b32 v{t}, v{r}", f"v_permlane32_swap_b32 v{r}, v{t}", f"v_add_f32 v{r}, v{r}, v{t}")
    A(f"v_pk_add_f32 {p2(24)}, {p2(32)}, {p2(34)}", f"v_pk_add_f32 {p2(26)}, {p2(36)}, {p2(38)}")
    for q in range(2, 8):
        A(f"v_pk_add_f32 {p2(24)}, {p2(24)}, {p2(32+4*q)}", f"v_pk_add_f32 {p2(26)}, {p2(26)}, {p2(34+4*q)}")
    A(f"v_pk_add_f32 {p2(24)}, {p2(24)}, {p2(26)}", f"v_add_f32 v{L(24)}, v{L(24)}, v{L(25)}")
    red8(24, 25)
    A(f"v_mul_f32 v{L(26)}, 0x3b800000, v{L(24)}")
    for q in range(16):
        t = 8 + 2*(q % 8); ac = 28 + 2*(q % 2)
        A(f"v_pk_add_f32 {p2(t)}, {p2(32+2*q)}, {p2(26)} op_sel_hi:[1,0] neg_lo:[0,1] neg_hi:[0,1]")
        if q < 2: A(f"v_pk_mul_f32 {p2(ac)}, {p2(t)}, {p2(t)}")
        else: A(f"v_pk_fma_f32 {p2(ac)}, {p2(t)}, {p2(t)}, {p2(ac)}")
    A(f"v_pk_add_f32 {p2(28)}, {p2(28)}, {p2(30)}", f"v_add_f32 v{L(27)}, v{L(28)}, v{L(29)}")
    red8(27, 25)
    A(f"ds_write_b64 v{L(6)}, {p2(26)}", "s_waitcnt lgkmcnt(0)", "s_barrier")
    for w in range(4): A(f"ds_read_b64 {p2(8+2*w)}, v{L(7)} offset:{64*w}")
    A(f"s_mul_i32 s{S_TAG}, s{S_TAG}, 0x9e3779b1", f"s_add_u32 s{S_TAG}, s{S_TAG}, 0x7f4a7c15", f"v_mov_b32 v{V_TAG}, s{S_TAG}")
    A("s_waitcnt lgkmcnt(0)")
    def V(s):
        import re
        return re.sub(r"\bv(\d+)\b", lambda m: f"v{L(int(m.group(1)))}", s)
    for s_ in ("v_add_f32 v16, v8, v10", "v_add_f32 v17, v12, v14", "v_add_f32 v16, v16, v17", "v_mul_f32 v16, 0x3e800000, v16",
               "v_add_f32 v17, v9, v11", "v_add_f32 v18, v13, v15", "v_add_f32 v17, v17, v18",
               "v_sub_f32 v8, v8, v16", "v_sub_f32 v10, v10, v16", "v_sub_f32 v12, v12, v16", "v_sub_f32 v14, v14, v16",
               "v_mul_f32 v18, v8, v8", "v_fmac_f32 v18, v10, v10", "v_fmac_f32 v18, v12, v12", "v_fmac_f32 v18, v14, v14",
               "v_mul_f32 v17, 0x3a800000, v17", "v_fmac_f32 v17, 0x3e800000, v18"): A(V(s_))
    def rbf(r): A(f"v_cvt_pk_bf16_f32 v{L(r)}, v{L(r)}, v{L(r)}", f"v_lshlrev_b32 v{L(r)}, 16, v{L(r)}")
    rbf(16); rbf(17)
    A(V("v_add_f32 v17, 0x3727c5ac, v17")); rbf(17)
    A(V("v_sqrt_f32 v17, v17")); rbf(17)
    A(V("v_rcp_f32 v17, v17"))
    for i in range(4):
        qs = range(4*i, 4*i+4)
        for q in qs: A(f"v_pk_add_f32 {p2(32+2*q)}, {p2(32+2*q)}, {p2(16)} op_sel_hi:[1,0] neg_lo:[0,1] neg_hi:[0,1]")
        for q in qs: A(f"v_cvt_pk_bf16_f32 v{L(32+2*q)}, v{L(32+2*q)}, v{L(33+2*q)}")
        for q in qs: A(f"v_and_b32 v{L(33+2*q)}, s89, v{L(32+2*q)}", f"v_lshlrev_b32 v{L(32+2*q)}, 16, v{L(32+2*q)}")
        for q in qs: A(f"v_pk_mul_f32 {p2(32+2*q)}, {p2(32+2*q)}, {p2(16)} op_sel:[0,1] op_sel_hi:[1,1]")
        for q in range(4): A(f"v_cvt_pk_bf16_f32 v{L(64+4*i+q)}, v{L(32+8*i+2*q)}, v{L(33+8*i+2*q)}")
        A(f"buffer_store_dwordx4 v[{L(64+4*i)}:{L(67+4*i)}], v{L(5)}, s[{R_KVP}:{R_KVP+3}], s88 offen sc1")
        if i < 3: A("s_add_u32 s88, s88, 8192")
    stamp(A, 2)
    A("s_lshl_b32 s79, s79, 2", f"s_add_u32 s79, s79, s{S_W}", "s_lshl_b32 s79, s79, 2")
    A(f"s_lshl_b32 s88, s{S_KS}, 11", f"v_add_u32 v{V_J}, s88, v2", f"v_xor_b32 v{V_J+1}, 2048, v{V_J}", f"v_xor_b32 v{V_J+2}, 4096, v{V_J}", f"v_xor_b32 v{V_J+3}, 0x1800, v{V_J}")
    A("v_lshlrev_b32 v26, 3, v23", "v_lshl_add_u32 v26, v25, 6, v26", "v_lshl_add_u32 v28, v22, 5, v26",
      "v_lshrrev_b32 v30, 5, v1", f"v_mul_u32_u24 v30, {WREG}, v30", "v_lshl_add_u32 v30, v22, 8, v30",
      f"v_add_u32 v{V_RD}, v30, v28", f"v_xor_b32 v{V_RD+1}, 32, v{V_RD}",
      f"v_lshl_add_u32 v{V_RD+2}, v27, 8, v28", f"v_xor_b32 v{V_RD+3}, 32, v{V_RD+2}")
    A("v_lshl_add_u32 v30, v27, 8, v26", f"v_add_u32 v30, {3*ST}, v30")
    A("v_bfe_u32 v26, v1, 2, 3", "v_lshl_add_u32 v26, v26, 11, v29", f"s_lshl_b32 s88, s{S_W}, 14", "v_add_u32 v26, s88, v26")
    for p in range(4): A(f"v_add_u32 v{V_W2+p}, {(p >> 1)*128 + (p & 1)*65536 - p*1024 + 2048}, v26")
    A("s_lshl_b32 s8, s8, 8")
    wsrd(R_WD, "s84", "s85", "s8", 3584*2048, 2048)
    A("s_mov_b32 s10, s86", "s_mov_b32 s11, s87") if False else None
    A("s_mov_b32 s98, s86", "s_mov_b32 s99, s87")
    A(f"s_lshl_b32 s9, s{S_MB}, 2", f"s_add_u32 s9, s9, s{S_W}")
    A("s_lshl_b32 s88, s9, 17")
    srd_off(A, R_X, 12, "s88", 131072)
    A(f"s_mul_i32 s88, s9, {ACT_GRP}", f"s_add_u32 s88, s88, {WS_ACT}")
    srd_off(A, R_ACT, 12, "s88", ACT_GRP)
    A(f"s_and_b32 s96, s{S_P}, 3", f"s_mul_i32 s97, s{S_KS}, {14*8192}")
    for i in range(4):
        A(f"s_xor_b32 s10, s96, {i}", "s_lshr_b32 s11, s10, 1", f"s_mul_i32 s11, s11, {7*8192}", "s_add_u32 s11, s11, s97", "s_and_b32 s10, s10, 1")
        if i in (0, 2): A(f"s_add_u32 s{S_TQ+12+i//2}, s11, {3*8192}")
        A(f"s_mul_i32 s{S_TQ+2*i}, s10, {5*8192}", f"s_add_u32 s{S_TQ+2*i}, s{S_TQ+2*i}, s11", f"s_add_u32 s{S_TQ+2*i+1}, s{S_TQ+2*i}, 8192",
          f"s_lshl_b32 s10, s10, 14", "s_add_u32 s10, s10, s11", f"s_add_u32 s{S_TQ+8+i}, s10, {2*8192}")
    A(f"s_cmp_eq_u32 s{S_TYPE}, 0", f"s_cselect_b32 s{S_TW0}, s{S_TQ}, s{S_TQ+8}", f"s_cselect_b32 s{S_TW1}, s{S_TQ+1}, s{S_TQ}")
    A(f"s_mov_b32 s{S_NL}, {NLOG2E:#x}", f"s_mov_b32 s{S_NL+1}, {LOG2E:#x}")
    A(f"s_mov_b32 s{S_RD}, 0", f"s_mov_b32 s{S_CNT}, 4", f"s_mov_b32 s{S_PST}, {ST}", f"s_mov_b32 s{S_NST}, {(-3*ST) & 0xffffffff:#x}")
    def flag(soff):
        A("s_mov_b64 exec, 1", f"buffer_store_dword v{V_TAG}, off, s[{R_FLAG}:{R_FLAG+3}], {soff} sc1", "s_mov_b64 exec, -1")
    npoll = [0]
    def pollf(mask, soff, off=0, vt=22):
        lab = f"L_poll{npoll[0]}"; npoll[0] += 1
        A(f"v_and_b32 v{vt}, {mask}, v1", f"v_lshlrev_b32 v{vt}, 2, v{vt}", "s_mov_b32 s10, 0x40000", f"{lab}:")
        A(f"buffer_load_dword v{vt+1}, v{vt}, s[{R_FLAG}:{R_FLAG+3}], {soff} offen offset:{off} sc1", "s_sub_u32 s10, s10, 1", f"s_cbranch_scc1 {lab}_out",
          "s_waitcnt vmcnt(0)", f"v_cmp_ne_u32 vcc, s{S_TAG}, v{vt+1}", f"s_cbranch_vccnz {lab}", f"{lab}_out:")
    A("s_waitcnt vmcnt(0)")
    flag("s79")
    stamp(A, 3)
    A(f"s_mov_b32 s{R_WDQ}, s{R_WD}", f"s_mov_b32 s{R_WDQ+1}, s{R_WD+1}", f"s_cmp_eq_u32 s{S_TYPE}, 0", f"s_cselect_b32 s{R_WDQ+2}, s{R_WD+2}, 0", f"s_mov_b32 s{R_WDQ+3}, 0x20000")
    A(f"s_lshl_b32 s96, s{S_P}, 2", f"s_add_u32 s96, s96, s{S_W}", "s_lshl_b32 s97, s96, 15", f"s_add_u32 s97, s97, {WS_KVP}")
    srd_off(A, R_KVP, 12, "s97", 32768)
    A("s_lshl_b32 s79, s9, 7")
    pollf(31, "s79")
    stamp(A, 4)
    def x_list(slot):
        return [f"buffer_load_dwordx4 {xr(slot, f >> 1, f & 1)}, v{V_J + (f >> 1)}, s[{R_X}:{R_X+3}], s{S_OX} offen offset:{(f & 1)*1024} sc1" for f in range(8)]
    x_post = [f"s_add_u32 s{S_OX}, s{S_OX}, 8192"]
    A(*x_list(0)); A(*x_post); A(*x_list(1)); A(*x_post); emit_dma()
    A("s_barrier")
    def rd(t):
        tt = t % 20
        sl, u, par = tt >> 2, (tt >> 1) & 1, tt & 1
        o = []
        for kk in range(2):
            for h in range(2):
                if sl < 4: o.append(f"ds_read_b64_tr_b16 {ar(t, kk, h)}, v{V_RD+par} offset:{h*2*WREG + (sl*2+kk)*1024 + u*512}")
                else: o.append(f"ds_read_b64_tr_b16 {ar(t, kk, h)}, v{V_RD+2+par} offset:{h*2*WREG + u*WREG + (8+kk)*1024}")
        return o
    for hd in range(2):
        for par in range(2):
            for h in range(2):
                b = 224 + (hd*2+par)*4 + 2*h
                A(f"ds_read_b64_tr_b16 a[{b}:{b+1}], v30 offset:{hd*2048 + h*1024 + par*32}")
    A(*rd(0)); A(*rd(1))
    if PROF:
        A("s_waitcnt vmcnt(18)"); stamp(A, 5)

    def w2_ops(R, soff_pre, slot, tag):
        o = []
        for p in range(4):
            pre = [f"s_add_u32 m0, s{S_WR}, {(slot >> 1)*ST + (slot & 1)*4096}", soff_pre] if p == 0 else []
            o.append((pre, f"buffer_load_dwordx4 v{V_W2+p}, s[{R}:{R+3}], s11 offen offset:{p*1024} lds", tag))
        return o

    def stage(xs, first=False, tail=None, vm=None):
        fill = {}
        def put(i, ins): fill.setdefault(i, []).extend(ins if isinstance(ins, list) else [ins])
        if tail is None:
            for n, ins in enumerate(x_list((xs+2) % 3)): put(8*(1+n)+3, ins)
            put(8*8+5, x_post)
            for n, (pre, ins) in enumerate(dma_list()):
                put(8*(9+n)+1, pre); put(8*(9+n)+3, ins)
            dp = dma_post()
            put(8*18+5, dp[0]); put(8*18+7, dp[1]); put(8*19+1, dp[2]); put(8*19+3, dp[3:5]); put(8*19+5, dp[5:7])
        else:
            for n, (pre, ins, tag) in enumerate(tail[1]):
                put(8*(1+n)+1, pre); put(8*(1+n)+3, ("vm", ins, tag))
        last = tail is not None and tail[0] == 15
        put(8*13+5, [f"s_add_u32 s{S_RD}, s{S_RD}, 1", f"s_and_b32 s{S_RD}, s{S_RD}, 3"])
        put(8*13+7, [f"s_cselect_b32 s{S_DL}, s{S_PST}, s{S_NST}"])
        put(8*15+5, f"v_add_u32 v{V_RD}, s{S_DL}, v{V_RD}"); put(8*15+7, f"v_add_u32 v{V_RD+1}, s{S_DL}, v{V_RD+1}")
        if not last:
            put(8*18+1, f"v_add_u32 v{V_RD+2}, s{S_DL}, v{V_RD+2}"); put(8*19+7, f"v_add_u32 v{V_RD+3}, s{S_DL}, v{V_RD+3}")
        for t in range(20):
            lg = 4 if not (last and t == 19) else 0
            if tail is None:
                if t == 0: A(f"s_waitcnt vmcnt({18 if first else 28}) lgkmcnt(4)")
                elif t == 1: A("s_waitcnt lgkmcnt(4)" if first else "s_waitcnt vmcnt(18) lgkmcnt(4)", "s_barrier")
                else: A("s_waitcnt lgkmcnt(4)")
            else:
                n = tail[0]
                if t == 0: A(vm.wait(("X", n)) + " lgkmcnt(4)")
                elif t == 1: A((vm.wait(("W1", n+1)) + " lgkmcnt(4)") if n < 15 else "s_waitcnt lgkmcnt(4)", "s_barrier")
                else: A(f"s_waitcnt lgkmcnt({lg})")
            if not (last and t >= 18):
                r = rd(t+2)
                for q in range(4): put(8*t+2*q, r[q])
            seen = set()
            for q, (j, kk) in enumerate(snake(t)):
                c = "0" if (first and j not in seen) else acc(t, j)
                seen.add(j)
                A(f"v_mfma_f32_16x16x32_bf16 {acc(t, j)}, {ar(t, kk)}, {xr(xs, j, kk)}, {c}")
                for x in fill.get(8*t+q, []):
                    if isinstance(x, tuple): vm.issue(x[1], x[2])
                    else: A(x)
    stage(0, first=True)
    A("L_loop:")
    stage(1); stage(2); stage(0)
    A(f"s_sub_u32 s{S_CNT}, s{S_CNT}, 1", f"s_cmp_lg_u32 s{S_CNT}, 0", "s_cbranch_scc1 L_loop")
    vm = VM(A)
    vm.ops = [("X", 13)]*8 + [("W1", 14)]*10 + [("X", 14)]*8 + [("W1", 15)]*10
    A(f"s_and_b32 s10, s{S_MB}, 3", f"s_lshl_b32 s10, s10, 2", f"s_add_u32 s10, s10, s{S_W}", f"s_mul_i32 s96, s10, {56*2048}", f"s_mul_i32 s97, s{S_KS}, {896*2048}",
      "s_add_u32 s96, s96, s97", f"s_add_u32 s97, s96, {24*2048}", "s_lshl_b32 s79, s10, 17")
    A("v_lshrrev_b32 v22, 1, v1", "v_lshlrev_b32 v22, 11, v22", "v_and_b32 v23, 1, v1", "v_lshl_add_u32 v22, v23, 7, v22")
    pf = [([], f"buffer_load_dword v0, v22, s[{R_WD}:{R_WD+3}], s96 offen offset:2048", "PF"), ([], f"buffer_load_dword v0, v22, s[{R_WD}:{R_WD+3}], s97 offen offset:2048", "PF")]
    def tw(sreg): return f"s_lshl_b32 s11, s{sreg}, 4"
    t13 = [([], i, ("X", 15)) for i in x_list(0)] + w2_ops(R_WD, tw(S_TW0), 0, ("W", 0)) + w2_ops(R_WD, tw(S_TW1), 1, ("W", 1)) + pf
    stage(1, tail=(13, t13), vm=vm)
    stage(2, tail=(14, w2_ops(R_WDQ, tw(S_TQ+2), 2, ("W", 2)) + w2_ops(R_WDQ, tw(S_TQ+3), 3, ("W", 3))), vm=vm)
    stage(0, tail=(15, w2_ops(R_WDQ, tw(S_TQ+4), 4, ("W", 4)) + w2_ops(R_WDQ, tw(S_TQ+5), 5, ("W", 5))), vm=vm)
    stamp(A, 6)
    A(f"s_lshl_b32 s{S_GL}, s9, 7")
    A(f"s_lshl_b32 s96, s{S_P}, 2", f"s_add_u32 s96, s96, s{S_W}", "s_lshl_b32 s97, s96, 10", f"s_add_u32 s97, s97, {WS_ZP}")
    srd_off(A, R_ZP, 12, "s97", 1024)
    A(f"s_lshl_b32 s65, s96, 7", f"s_add_u32 s65, s65, {F_KV}")
    wsrd(R_WO, "s6", "s7", "s8", 1024*2048, 2048)
    A(f"v_mov_b32 v{V_RD2}, v{V_RD}", f"v_mov_b32 v{V_RD2+1}, v{V_RD+1}")
    for b in range(1, 4):
        A(f"v_add_u32 v{V_RD2+2*b}, {b*ST}, v{V_RD2}", f"v_add_u32 v{V_RD2+2*b+1}, {b*ST}, v{V_RD2+1}")
    A(f"s_lshl_b32 s66, s{S_P}, 2", f"s_add_u32 s66, s66, s{S_GL}")
    A(f"s_lshl_b32 s67, s{S_KS}, 4", f"s_add_u32 s67, s67, s{S_GL}", f"s_add_u32 s67, s67, {F_H}")

    def mk_store(vm):
        def hstore(soff):
            def st(key, q):
                j, u = key
                vm.issue(f"buffer_store_dwordx4 v[{q}:{q+3}], v{V_J+j}, s[{R_ACT}:{R_ACT+3}], s{soff} offen offset:{u*1024} sc1", "HS")
            return st
        return hstore
    def aread(dst, src):
        for r in range(4): A(f"v_accvgpr_read_b32 v{dst+r}, a{src+r}")
    def feat(items, normalize):
        for fq, hd, p0, ep, sp in items:
            for par in range(2):
                A(f"v_mfma_f32_16x16x32_bf16 v[{p0+4*par}:{p0+4*par+3}], {wphi(hd, par)}, v[{fq}:{fq+3}], 0")
        for fq, hd, p0, ep, sp in items:
            A(f"v_max3_f32 v{sp}, v{p0}, v{p0+1}, v{p0+2}", f"v_max3_f32 v{sp+1}, -v{p0}, -v{p0+1}, -v{p0+2}",
              f"v_max3_f32 v{sp}, v{sp}, v{p0+3}, v{p0+4}", f"v_max3_f32 v{sp+1}, v{sp+1}, -v{p0+3}, -v{p0+4}",
              f"v_max3_f32 v{sp}, v{sp}, v{p0+5}, v{p0+6}", f"v_max3_f32 v{sp+1}, v{sp+1}, -v{p0+5}, -v{p0+6}",
              f"v_max_f32 v{sp}, v{sp}, v{p0+7}", f"v_max_f32_e64 v{sp+1}, v{sp+1}, -v{p0+7}")
        groups = [(items[i][4], items[i+1][4]) for i in range(0, len(items), 2)]
        xlane_reduce(A, groups, "v_max_f32", lambda r: f"v_mul_f32 v{r}, s{S_NL}, v{r}")
        for fq, hd, p0, ep, sp in items:
            for i in range(0, 8, 2):
                A(f"v_pk_fma_f32 v[{ep+i}:{ep+i+1}], v[{p0+i}:{p0+i+1}], s[{S_NL}:{S_NL+1}], v[{sp}:{sp+1}] op_sel:[0,1,0] op_sel_hi:[1,1,0]")
            for i in range(0, 8, 2):
                A(f"v_pk_fma_f32 v[{p0+i}:{p0+i+1}], v[{p0+i}:{p0+i+1}], s[{S_NL}:{S_NL+1}], v[{sp}:{sp+1}] op_sel:[0,0,1] op_sel_hi:[1,0,1]")
            for i in range(8): A(f"v_exp_f32 v{ep+i}, v{ep+i}")
            for i in range(8): A(f"v_exp_f32 v{p0+i}, v{p0+i}")
        if normalize:
            for fq, hd, p0, ep, sp in items:
                A(f"v_pk_add_f32 v[{fq}:{fq+1}], v[{ep}:{ep+1}], v[{ep+2}:{ep+3}]", f"v_pk_add_f32 v[{fq+2}:{fq+3}], v[{p0}:{p0+1}], v[{p0+2}:{p0+3}]",
                  f"v_pk_add_f32 v[{fq}:{fq+1}], v[{fq}:{fq+1}], v[{ep+4}:{ep+5}]", f"v_pk_add_f32 v[{fq+2}:{fq+3}], v[{fq+2}:{fq+3}], v[{p0+4}:{p0+5}]",
                  f"v_pk_add_f32 v[{fq}:{fq+1}], v[{fq}:{fq+1}], v[{ep+6}:{ep+7}]", f"v_pk_add_f32 v[{fq+2}:{fq+3}], v[{fq+2}:{fq+3}], v[{p0+6}:{p0+7}]",
                  f"v_add_f32 v{sp}, v{fq}, v{fq+1}", f"v_add_f32 v{sp+1}, v{fq+2}, v{fq+3}")
            xlane_reduce(A, groups, "v_add_f32", lambda r: f"v_rcp_f32 v{r}, v{r}")
            for fq, hd, p0, ep, sp in items:
                for i in range(0, 8, 2):
                    A(f"v_pk_mul_f32 v[{ep+i}:{ep+i+1}], v[{ep+i}:{ep+i+1}], v[{sp}:{sp+1}] op_sel_hi:[1,0]")
                for i in range(0, 8, 2):
                    A(f"v_pk_mul_f32 v[{p0+i}:{p0+i+1}], v[{p0+i}:{p0+i+1}], v[{sp}:{sp+1}] op_sel:[0,1]")

    def rd2(n, t, nring):
        sl, u, par = t >> 2, (t >> 1) & 1, t & 1
        s_ = n % 8
        return [f"ds_read_b64_tr_b16 {ar(t, kk, h, nring)}, v{V_RD2 + 2*(s_ >> 1) + par} offset:{(s_ & 1)*4096 + h*2*WREG + (sl*2+kk)*1024 + u*512}"
                for kk in range(2) for h in range(2)]
    class P1:
        def __init__(s, vm, order, own, nw):
            s.vm = vm; s.order = order; s.own = own; s.nw = nw; s.na = len(own); s.alim = len(own)
            s.ring = {}; s.rnext = 0
        def wops(s, n):
            if n < NS1: return w2_ops(R_WD, tw(S_TQ + s.order[n]), n % 8, ("W", n))
            return w2_ops(R_WO, f"s_mov_b32 s11, {(n-NS1)*131072}", n % 8, ("W", n))
        def aops(s, n):
            b = RING[(n-1) % 5]; s.ring[n] = b
            if n < NS1:
                return [([], f"buffer_load_dwordx4 a[{b+4*f}:{b+4*f+3}], v{V_J + (f >> 1)}, s[{R_ACT}:{R_ACT+3}], s{S_TQ + s.order[n]} offen offset:{(f & 1)*1024} sc1", ("A", n)) for f in range(8)]
            o = []
            for f in range(8):
                pre = [f"s_mov_b32 s10, {(56 + (n-NS1)*4 + (f >> 1))*8192}"] if f % 2 == 0 else []
                o.append((pre, f"buffer_load_dwordx4 a[{b+4*f}:{b+4*f+3}], v{V_J}, s[{R_ACT}:{R_ACT+3}], s10 offen offset:{(f & 1)*1024} sc1", ("A", n)))
            return o
        def more_acts(s, cur, cap=99):
            o = []
            lo = max(cur, len(s.own))
            while s.na < s.alim and s.na < lo + 5 and cap > 0:
                o += s.aops(s.na); s.na += 1; cap -= 1
            return o
        def more_w(s, cur, wlim, cap=2):
            o = []
            while s.nw < min(NT, wlim) and s.nw <= cur - 1 + 8 and cap > 0:
                o += s.wops(s.nw); s.nw += 1; cap -= 1
            return o
        def emit(s, ops):
            for pre, ins, tag in ops:
                A(*pre); s.vm.issue(ins, tag)
        def bfrag(s, n, j, kk):
            if n < len(s.own): return q4('v', s.own[n][(j, kk)])
            return q4('a', s.ring[n] + (j*2+kk)*4)
        def stage(s, n):
            ops = s.more_acts(n, 2) + s.more_w(n, C["ovl"] + 8)
            fill = {}
            pos = [9 + 2*((54*i//max(len(ops), 1))//2) for i in range(len(ops))]
            for i, o in zip(pos, ops): fill.setdefault(i, []).append(o)
            for t in range(8):
                if t == 0 and n >= len(s.own): A(s.vm.wait(("A", n)) + " lgkmcnt(4)")
                elif t == 1: A(s.vm.wait(("W", n+1)) + " lgkmcnt(4)", "s_barrier")
                else: A("s_waitcnt lgkmcnt(4)")
                r = rd2(n, t+2, 4) if t+2 < 8 else rd2(n+1, t+2-8, 4)
                seen = set()
                for q, (j, kk) in enumerate(snake(t)):
                    b = acc2(t, j)
                    c = "0" if (n == 0 and j not in seen) else f"v[{b}:{b+3}]"
                    seen.add(j)
                    A(f"v_mfma_f32_16x16x32_bf16 v[{b}:{b+3}], {ar(t, kk)}, {s.bfrag(n, j, kk)}, {c}")
                    if q % 2 == 0: A(r[q//2])
                    s.emit(fill.get(8*t+q, []))
    def wo_prefetch(vm):
        A("v_lshrrev_b32 v22, 1, v1", "v_lshlrev_b32 v22, 11, v22", "v_and_b32 v23, 1, v1", "v_lshl_add_u32 v22, v23, 7, v22", f"s_add_u32 s10, s79, {32*2048}")
        vm.issue(f"buffer_load_dword v0, v22, s[{R_WO}:{R_WO+3}], s79 offen offset:2048", "PF")
        vm.issue(f"buffer_load_dword v0, v22, s[{R_WO}:{R_WO+3}], s10 offen offset:2048", "PF")
    def o_poll(p):
        pollf(15, f"s{S_GL}", 0) if False else None
        A(f"s_add_u32 s11, s{S_GL}, {F_O}")
        pollf(15, "s11")
        p.alim = NS1 + 4

    A(f"s_cmp_eq_u32 s{S_TYPE}, 0", "s_cbranch_scc1 L_Q")
    vk = VM(A); vk.ops = list(vm.ops); hst = mk_store(vk)
    A("v_and_b32 v15, 15, v1", "v_bfe_u32 v16, v1, 1, 2", "v_lshrrev_b32 v30, 4, v1", "v_xor_b32 v16, v16, v30",
      "v_lshlrev_b32 v15, 6, v15", "v_lshl_add_u32 v15, v16, 4, v15", f"v_add_u32 v15, s{S_WR}, v15", f"v_add_u32 v15, {ST}, v15", f"v_add_u32 v16, {ST}, v15")
    for hd in range(2):
        for j in range(4): pack2(A, vq(12+2*hd, j), vq(12+2*hd, j), vq(13+2*hd, j))
    A("s_waitcnt vmcnt(0)")
    for hd in range(2):
        for j in range(4):
            q = vq(12+2*hd, j)
            A(f"ds_write_b128 v15, v[{q}:{q+3}] offset:{hd*4096 + j*1024}")
    for hd in range(2):
        for j in range(4): pack2(A, vq(8+2*hd, j), vq(8+2*hd, j), vq(9+2*hd, j))
    A("s_waitcnt lgkmcnt(0)")
    T12 = vq(12, 0)
    for hd in range(2):
        items = [(vq(8+2*hd, j), hd, T12+16*j, T12+16*j+8, 22+2*j) for j in range(4)]
        feat(items, True)
        if hd == 1: A("s_barrier")
        for j, (fq, _, p0, ep, sp) in enumerate(items):
            d0 = vq(9+2*hd, j)
            pack2(A, d0, ep, ep+4); pack2(A, fq, p0, p0+4)
            A(f"ds_write_b128 v16, v[{d0}:{d0+3}] offset:{hd*ST + j*1024}", f"ds_write_b128 v16, v[{fq}:{fq+3}] offset:{hd*ST + 4096 + j*1024}")
    A("v_lshrrev_b32 v22, 2, v1", "v_bfe_u32 v23, v1, 3, 2", "v_and_b32 v24, 3, v1", "v_xor_b32 v23, v23, v24",
      "v_lshlrev_b32 v22, 6, v22", "v_lshl_add_u32 v22, v23, 4, v22")
    A(f"s_lshr_b32 s96, s{S_W}, 1", f"s_mul_i32 s97, s96, {ST}", f"s_and_b32 s10, s{S_W}, 1", "s_lshl_b32 s10, s10, 12", "s_add_u32 s97, s97, s10", f"s_add_u32 s97, s97, {2*ST}",
      "s_lshl_b32 s96, s96, 12", f"s_add_u32 s96, s96, {ST}")
    A("v_add_u32 v23, s96, v22", "v_add_u32 v22, s97, v22")
    A("v_mov_b32 v24, 0x3f803f80", "v_mov_b32 v25, v24", "v_mov_b32 v26, v24", "v_mov_b32 v27, v24")
    A("s_waitcnt lgkmcnt(0)", "s_barrier")
    stamp(A, 7)
    KVA = T12
    def kvrd(kb):
        o = []
        b = 96 + kb*16
        for m, vr in ((0, 22), (1, 23)):
            for par in range(2):
                for h in range(2):
                    r = b + m*8 + par*4 + 2*h
                    o.append(f"ds_read_b64_tr_b16 a[{r}:{r+1}], v{vr} offset:{(kb >> 1)*WREG + (kb & 1)*2048 + h*1024 + 8*par}")
        return o
    A(*kvrd(0))
    for kb in range(8):
        if kb + 1 < 8: A(*kvrd(kb+1)); A("s_waitcnt lgkmcnt(8)")
        else: A("s_waitcnt lgkmcnt(0)", "s_barrier")
        b = 96 + kb*16
        for fp in range(2):
            for dp in range(2):
                d = KVA + (dp*2+fp)*4
                A(f"v_mfma_f32_16x16x32_bf16 v[{d}:{d+3}], a[{b+fp*4}:{b+fp*4+3}], a[{b+8+dp*4}:{b+8+dp*4+3}], " + ("0" if kb == 0 else f"v[{d}:{d+3}]"))
            d = KVA + 16 + fp*4
            A(f"v_mfma_f32_16x16x32_bf16 v[{d}:{d+3}], a[{b+fp*4}:{b+fp*4+3}], v[24:27], " + ("0" if kb == 0 else f"v[{d}:{d+3}]"))
    A(f"s_lshl_b32 s96, s{S_MB}, 12", f"s_lshl_b32 s97, s{S_MB}, 7", f"s_lshl_b32 s10, s{S_MB}, 2", "s_add_u32 s65, s65, s10")
    A("v_and_b32 v28, 48, v1")
    for q in range(4):
        vk.issue(f"buffer_store_dwordx4 v[{KVA+4*q}:{KVA+4*q+3}], v2, s[{R_KVP}:{R_KVP+3}], s96 offen offset:{q*1024} sc1", "KS")
    A("s_mov_b32 exec_lo, 0x00010001", "s_mov_b32 exec_hi, 0x00010001")
    for fp in range(2):
        vk.issue(f"buffer_store_dwordx4 v[{KVA+16+4*fp}:{KVA+19+4*fp}], v28, s[{R_ZP}:{R_ZP+3}], s97 offen offset:{fp*64} sc1", "KS")
    A("s_mov_b64 exec, -1")
    own_kv = [{(j, kk): 192 + (kk*4+j)*4 for j in range(4) for kk in range(2)}]
    pk = P1(vk, [8] + list(range(8)) + [9, 10, 11, 12, 13], own_kv, 2)
    glu(A, [(vq(16, j), vq(17, j), vq(18, j), vq(19, j), vq(18, j), (j, 0)) for j in range(2)], hst(S_ACTB))
    A(vk.wait("KS")); flag("s65")
    stamp(A, 8)
    pollf(3, "s67"); pk.alim = 9
    stamp(A, 9)
    pk.emit(pk.more_acts(0, 3))
    pk.emit(pk.more_w(0, 99, 3))
    glu(A, [(vq(16, j), vq(17, j), vq(18, j), vq(19, j), vq(18, j), (j, 0)) for j in range(2, 4)], hst(S_ACTB))
    T8 = vq(8, 0)
    for j in range(4): aread(T8+8*j, aq(4, j)); aread(T8+8*j+4, aq(5, j))
    glu(A, [(vq(0, j), vq(1, j), T8+8*j, T8+8*j+4, own_kv[0][(j, 0)], (j, 0)) for j in range(4)], hst(S_TW0))
    for j in range(4):
        b = T8 + 32 + 16*j
        aread(b, aq(2, j)); aread(b+4, aq(3, j)); aread(b+8, aq(6, j)); aread(b+12, aq(7, j))
    glu(A, [(T8+32+16*j, T8+36+16*j, T8+40+16*j, T8+44+16*j, own_kv[0][(j, 1)], (j, 1)) for j in range(4)], hst(S_TW0))
    A(*rd2(0, 0, 4)); A(*rd2(0, 1, 4))
    wo_prefetch(vk)
    stamp(A, 10)
    for n in range(NS1):
        if n == 1:
            A(vk.wait("HS"), f"s_add_u32 s11, s66, {F_H + 64}"); flag("s11")
        if n == 4:
            pollf(3, "s67", 64); pk.alim = NS1
        if n == C["ovl"]: o_poll(pk)
        pk.stage(n)
    A("s_branch L_P2")
    A("L_Q:")
    vqm = VM(A); vqm.ops = list(vm.ops); hst = mk_store(vqm)
    ownA = {(j, kk): (vq(17, j) if kk == 0 else vq(19, j)) for j in range(4) for kk in range(2)}
    ownB = {(j, kk): (vq(15, j) if kk == 0 else vq(14, j)) for j in range(4) for kk in range(2)}
    pq = P1(vqm, list(range(14)), [ownA, ownB], 6)
    glu(A, [(vq(8+2*u, j), vq(9+2*u, j), vq(12+2*u, j), vq(13+2*u, j), ownB[(j, u)], (j, u)) for u in (1, 0) for j in range(4)], hst(S_ACTB))
    for hd in range(2):
        for j in range(4): pack2(A, vq(16+2*hd, j), vq(16+2*hd, j), vq(17+2*hd, j))
    for j in range(4): aread(T8+8*j, aq(4, j)); aread(T8+8*j+4, aq(5, j))
    glu(A, [(vq(0, j), vq(1, j), T8+8*j, T8+8*j+4, ownA[(j, 0)], (j, 0)) for j in range(4)], hst(S_TW0))
    for j in range(4):
        b = T8 + 32 + 16*j
        aread(b, aq(2, j)); aread(b+4, aq(3, j)); aread(b+8, aq(6, j)); aread(b+12, aq(7, j))
    glu(A, [(T8+32+16*j, T8+36+16*j, T8+40+16*j, T8+44+16*j, ownA[(j, 1)], (j, 1)) for j in range(4)], hst(S_TW0))
    stamp(A, 7)
    def eq(hd, sg, j): return (64 if hd == 0 else 224) + (sg*4+j)*4
    for hd in range(2):
        items = [(vq(16+2*hd, j), hd, 32+16*j, 32+16*j+8, 22+2*j) for j in range(4)]
        feat(items, False)
        for j, (fq, _, p0, ep, sp) in enumerate(items):
            pack2(A, ep, ep, ep+4); pack2(A, p0, p0, p0+4)
            for r in range(4): A(f"v_accvgpr_write_b32 a{eq(hd, 0, j)+r}, v{ep+r}")
            for r in range(4): A(f"v_accvgpr_write_b32 a{eq(hd, 1, j)+r}, v{p0+r}")
        if hd == 0:
            A("s_waitcnt vmcnt(0)", f"s_add_u32 s11, s66, {F_H}"); flag("s11")
    A("s_barrier")
    A(*rd2(0, 0, 4)); A(*rd2(0, 1, 4))
    pq.emit(pq.more_w(0, 99, 2))
    wo_prefetch(vqm)
    stamp(A, 8)
    LB = 192
    def kv_batch(b):
        for m in range(4):
            A(f"s_mov_b32 s10, {(4*b+m)*4096}")
            for q in range(4):
                r = LB + m*16 + q*4
                vqm.issue(f"buffer_load_dwordx4 v[{r}:{r+3}], v2, s[{R_KVP}:{R_KVP+3}], s10 offen offset:{q*1024} sc1", ("KV", b))
    def ev_kv():
        stamp(A, 9)
        pollf(7, "s65")
        stamp(A, 10)
        vqm.issue(f"buffer_load_dwordx4 v[24:27], v2, s[{R_ZP}:{R_ZP+3}], 0 offen sc1", "Z")
        kv_batch(0)
    def ev_sum1():
        A(vqm.wait(("KV", 0)))
        for i in range(0, 16, 2): A(f"v_pk_add_f32 v[{FR+i}:{FR+i+1}], v[{LB+i}:{LB+i+1}], v[{LB+16+i}:{LB+16+i+1}]")
        for i in range(0, 16, 2): A(f"v_pk_add_f32 v[{FR+16+i}:{FR+16+i+1}], v[{LB+32+i}:{LB+32+i+1}], v[{LB+48+i}:{LB+48+i+1}]")
        kv_batch(1)
        for i in range(0, 16, 2): A(f"v_pk_add_f32 v[{FR+i}:{FR+i+1}], v[{FR+i}:{FR+i+1}], v[{FR+16+i}:{FR+16+i+1}]")
        for r in range(24, 28): A(f"v_add_f32_dpp v{r}, v{r}, v{r} row_ror:8 row_mask:0xf bank_mask:0xf")
        t = FR + 16
        for r in range(4): A(f"v_mov_b32 v{t+r}, v{24+r}")
        for r in range(4): A(f"v_permlane16_swap_b32 v{24+r}, v{t+r}")
        for r in range(4): A(f"v_add_f32 v{24+r}, v{24+r}, v{t+r}")
        for r in range(4): A(f"v_mov_b32 v{t+r}, v{24+r}")
        for r in range(4): A(f"v_permlane32_swap_b32 v{24+r}, v{t+r}")
        for r in range(4): A(f"v_add_f32 v{24+r}, v{24+r}, v{t+r}")
        A("v_and_b32 v22, 3, v1", "v_lshlrev_b32 v22, 4, v22", "v_bfe_u32 v23, v1, 2, 1", "v_lshl_add_u32 v22, v23, 3, v22",
          "v_and_b32 v23, 7, v1", "v_lshlrev_b32 v23, 3, v23", "v_add_u32 v23, 64, v23", "v_and_b32 v28, 8, v1", "v_cmp_eq_u32 vcc, 0, v28",
          "v_cndmask_b32 v22, v23, v22, vcc", f"v_add_u32 v22, s{S_WR}, v22")
        A("v_cvt_pk_bf16_f32 v24, v24, v25", "v_cvt_pk_bf16_f32 v25, v26, v27", "v_mov_b32 v26, 0x3f803f80",
          "v_cndmask_b32 v24, v26, v24, vcc", "v_cndmask_b32 v25, v26, v25, vcc")
        A(f"ds_write_b64 v22, v[24:25] offset:{ST + 8192}", "s_waitcnt lgkmcnt(0)")
    def ev_o():
        stamp(A, 11)
        A(vqm.wait(("KV", 1)))
        for m in range(4):
            for i in range(0, 16, 2): A(f"v_pk_add_f32 v[{FR+i}:{FR+i+1}], v[{FR+i}:{FR+i+1}], v[{LB+16*m+i}:{LB+16*m+i+1}]")
        A(f"v_add_u32 v22, s{S_WR}, v2")
        for dp in range(2):
            pack2(A, FR+16+4*dp, FR+8*dp, FR+8*dp+4)
            A(f"ds_write_b128 v22, v[{FR+16+4*dp}:{FR+19+4*dp}] offset:{8192 + dp*1024}")
        A("v_lshrrev_b32 v22, 4, v1", "v_lshlrev_b32 v22, 4, v22", "v_and_b32 v23, 3, v1", "v_cmp_eq_u32 vcc, 1, v23", "v_mov_b32 v23, 64",
          "v_cndmask_b32 v22, v22, v23, vcc", f"v_add_u32 v22, {ST}, v22")
        A(f"s_lshl_b32 s96, s{S_P}, 13", f"s_add_u32 s96, s96, {56*8192}", "s_mov_b32 s97, 0x358637bd")
        A("s_waitcnt lgkmcnt(0)", "s_barrier")
        FG = FR
        for wq in range(4):
            b = FG + wq*12
            A(f"ds_read_b128 v[{b}:{b+3}], v2 offset:{wq*WREG+8192}", f"ds_read_b128 v[{b+4}:{b+7}], v2 offset:{wq*WREG+8192+1024}",
              f"ds_read_b128 v[{b+8}:{b+11}], v22 offset:{wq*WREG+8192}")
        def mm(hd, j, o):
            for sg in range(2):
                b = FG + (hd*2+sg)*12
                e = q4('a', eq(hd, sg, j))
                A(f"v_mfma_f32_16x16x32_bf16 v[{o+16+4*sg}:{o+19+4*sg}], v[{b+8}:{b+11}], {e}, 0")
            for sg in range(2):
                b = FG + (hd*2+sg)*12
                e = q4('a', eq(hd, sg, j))
                for dp in range(2):
                    A(f"v_mfma_f32_16x16x32_bf16 v[{o+8*sg+4*dp}:{o+8*sg+4*dp+3}], v[{b+4*dp}:{b+4*dp+3}], {e}, 0")
        def fin(hd, j, o):
            zp = o+16; zm = o+20
            A(f"v_mul_f32 v{zp+2}, s97, v{zp+1}", f"v_add_f32 v{zp+2}, v{zp+2}, v{zp}", f"v_mul_f32 v{zp+2}, v{zp+2}, v{zm+1}",
              f"v_fmac_f32 v{zp+2}, v{zm}, v{zp+1}", f"v_rcp_f32 v{zp+2}, v{zp+2}")
            A(f"v_mul_f32 v{zm+2}, v{zm+1}, v{zp+2}", f"v_mul_f32 v{zm+3}, v{zp+1}, v{zp+2}")
            for i in range(0, 8, 2):
                A(f"v_pk_mul_f32 v[{o+i}:{o+i+1}], v[{o+i}:{o+i+1}], v[{zm+2}:{zm+3}] op_sel_hi:[1,0]")
            for i in range(0, 8, 2):
                A(f"v_pk_fma_f32 v[{o+i}:{o+i+1}], v[{o+8+i}:{o+8+i+1}], v[{zm+2}:{zm+3}], v[{o+i}:{o+i+1}] op_sel:[0,1,0]")
            pack2(A, 24, o, o+4)
            vqm.issue(f"buffer_store_dwordx4 v[24:27], v{V_J+j}, s[{R_ACT}:{R_ACT+3}], s96 offen offset:{hd*1024} sc1", "OS")
        A("s_waitcnt lgkmcnt(0)")
        seq = [(hd, j) for hd in range(2) for j in range(4)]
        mm(*seq[0], 208)
        for i, (hd, j) in enumerate(seq):
            if i + 1 < 8: mm(*seq[i+1], 208 + 24*((i+1) & 1))
            fin(hd, j, 208 + 24*(i & 1))
        stamp(A, 12)
    for n in range(NS1):
        if n == C["q_pollq"]:
            pollf(3, "s67"); pq.alim = 8
            pq.emit(pq.more_acts(n, 2))
        if n == C["q_kv"]: ev_kv()
        if n == C["q_sum1"]: ev_sum1()
        if n == C["q_o"]: ev_o()
        if n == C["q_pollkv"]:
            pollf(3, "s67", 64); pq.alim = NS1
            A(f"s_add_u32 s11, s66, {F_O}"); flag("s11")
        if n == C["ovl"]: o_poll(pq)
        pq.stage(n)
    A("L_P2:")
    stamp(A, 13)
    assert pq.nw == pk.nw and pq.na == pk.na, (pq.nw, pk.nw, pq.na, pk.na)
    ringq = [pq.ring.get(n) for n in range(NS1, NS1+4)]; ringk = [pk.ring.get(n) for n in range(NS1, NS1+4)]
    assert ringq == ringk, (ringq, ringk)
    k = 0
    while k < min(len(vqm.ops), len(vk.ops)) and vqm.ops[-1-k] == vk.ops[-1-k]: k += 1
    v2m = VM(A); suffix = vqm.ops[len(vqm.ops)-k:]
    older = [t for t in set(vqm.ops) | set(vk.ops)]
    v2m.ops = older + suffix
    class VM2(VM):
        def count_after(s, tags):
            return min(VM.count_after(s, tags), len(s.ops) - len(older))
    v2m.__class__ = VM2
    p = pq; p.vm = v2m
    A(f"s_lshl_b32 s96, s{S_MB}, 3", "s_lshr_b32 s97, s8, 8", "s_add_u32 s96, s96, s97", "s_lshl_b32 s97, s96, 18", f"s_lshl_b32 s10, s{S_W}, 12", "s_add_u32 s97, s97, s10", f"s_add_u32 s97, s97, {WS_PART}")
    srd_off(A, R_PS, 12, "s97", 1 << 18)
    A("s_lshl_b32 s96, s96, 2", f"s_add_u32 s96, s96, s{S_W}", "s_lshl_b32 s96, s96, 7", f"s_add_u32 s68, s96, {F_P}")
    for j in range(1, 4):
        A(f"s_xor_b32 s10, s{S_KS}, {j}", "s_lshl_b32 s10, s10, 16", f"s_lshl_b32 s11, s{S_KS}, 14", "s_add_u32 s10, s10, s11")
        for tp in range(4):
            d = acc2(2*tp, j)
            pack2(A, d, d, acc2(2*tp+1, j))
            v2m.issue(f"buffer_store_dwordx4 v[{d}:{d+3}], v2, s[{R_PS}:{R_PS+3}], s10 offen offset:{tp*1024} sc1", "PS")
    A("s_lshl_b32 s96, s9, 17", f"s_lshl_b32 s97, s{S_KS}, 15", "s_add_u32 s96, s96, s97", "s_add_u32 s96, s96, s8", f"s_sub_u32 s97, {4*MB}, s96")
    srd_off(A, R_XR, 4, "s96", "s97")
    srd_off(A, R_OUT, 98, "s96", "s97")
    A(f"v_and_b32 v{V_OUT}, 15, v1", f"v_lshlrev_b32 v{V_OUT}, 11, v{V_OUT}", "v_lshrrev_b32 v22, 4, v1", f"v_lshl_add_u32 v{V_OUT}, v22, 3, v{V_OUT}")
    A(*rd2(NS1, 2, 8))
    for n in range(NS1, NT):
        ops = p.more_acts(NS1, 1) + p.more_w(n, NT, 2)
        m = n - NS1
        if n == NS1 + 1:
            ops += [([], f"buffer_load_dwordx2 v[{XR+2*t}:{XR+2*t+1}], v{V_OUT}, s[{R_XR}:{R_XR+3}], 0 offen offset:{32*t}", "XR") for t in range(8)]
        if n == C["flag_stage"]:
            A(v2m.wait("PS"), f"s_lshl_b32 s11, s{S_KS}, 2", "s_add_u32 s11, s11, s68"); flag("s11"); v2m.ops.append("FL")
            stamp(A, 14)
        if n == C["poll_stage"]:
            stamp(A, 15)
            pollf(3, "s68")
            stamp(A, 16)
            for j in range(1, 4):
                A(f"s_xor_b32 s10, s{S_KS}, {j}", "s_lshl_b32 s10, s10, 14", f"s_lshl_b32 s11, s{S_KS}, 16", "s_add_u32 s10, s10, s11")
                for tp in range(4):
                    d = PL + (j-1)*16 + tp*4
                    v2m.issue(f"buffer_load_dwordx4 v[{d}:{d+3}], v2, s[{R_PS}:{R_PS+3}], s10 offen offset:{tp*1024} sc1", "PL")
        per = (len(ops) + 6)//7
        for t in range(8):
            last = (n == NT-1)
            nxt = (n, t+3) if t+3 < 8 else (n+1, t+3-8)
            rem = 8 if not last else min(8, 4*(7-t))
            if t == 0 and m % 4 == 0: A(v2m.wait(("A", NS1 + m//4)) + f" lgkmcnt({rem})")
            elif t == 1 and not last: A(v2m.wait(("W", n+1)) + f" lgkmcnt({rem})", "s_barrier")
            else: A(f"s_waitcnt lgkmcnt({rem})")
            r = rd2(*nxt, 8) if nxt[0] < NT else [""]*4
            b = sacc(t)
            for kk in range(2):
                c = "0" if (m == 0 and kk == 0) else f"v[{b}:{b+3}]"
                A(f"v_mfma_f32_16x16x32_bf16 v[{b}:{b+3}], {ar(t, kk, None, 8)}, {q4('a', p.ring[NS1 + m//4] + ((m % 4)*2+kk)*4)}, {c}")
                A(r[2*kk], r[2*kk+1])
            if t >= 1:
                p.emit(ops[:per]); ops = ops[per:]
        assert not ops
    stamp(A, 17)
    A("s_waitcnt vmcnt(0)", "s_mov_b32 s97, 0xffff0000")
    for tp in range(4):
        for hf in range(2):
            t = 2*tp + hf; d = acc2(t, 0); tm = acc2(t, 1)
            for j in range(3):
                pp = PL + j*16 + tp*4 + hf*2
                A(f"v_lshlrev_b32 v{tm}, 16, v{pp}", f"v_and_b32 v{tm+1}, s97, v{pp}", f"v_lshlrev_b32 v{tm+2}, 16, v{pp+1}", f"v_and_b32 v{tm+3}, s97, v{pp+1}")
                A(f"v_pk_add_f32 v[{d}:{d+1}], v[{d}:{d+1}], v[{tm}:{tm+1}]", f"v_pk_add_f32 v[{d+2}:{d+3}], v[{d+2}:{d+3}], v[{tm+2}:{tm+3}]")
            e = acc2(t, 2); x = acc2(t, 3); sa = sacc(t)
            A(f"v_pk_mul_f32 v[{e}:{e+1}], v[{d}:{d+1}], s[{S_NL}:{S_NL+1}] op_sel_hi:[1,0]", f"v_pk_mul_f32 v[{e+2}:{e+3}], v[{d+2}:{d+3}], s[{S_NL}:{S_NL+1}] op_sel_hi:[1,0]")
            for r in range(4): A(f"v_exp_f32 v{e+r}, v{e+r}")
            A(f"v_pk_mul_f32 v[{d}:{d+1}], v[{d}:{d+1}], v[{sa}:{sa+1}]", f"v_pk_mul_f32 v[{d+2}:{d+3}], v[{d+2}:{d+3}], v[{sa+2}:{sa+3}]")
            A(f"v_pk_add_f32 v[{e}:{e+1}], v[{e}:{e+1}], 1.0 op_sel_hi:[1,0]", f"v_pk_add_f32 v[{e+2}:{e+3}], v[{e+2}:{e+3}], 1.0 op_sel_hi:[1,0]")
            for r in range(4): A(f"v_rcp_f32 v{e+r}, v{e+r}")
            pp = XR + 2*t
            A(f"v_lshlrev_b32 v{x}, 16, v{pp}", f"v_and_b32 v{x+1}, s97, v{pp}", f"v_lshlrev_b32 v{x+2}, 16, v{pp+1}", f"v_and_b32 v{x+3}, s97, v{pp+1}")
            A(f"v_pk_fma_f32 v[{d}:{d+1}], v[{d}:{d+1}], v[{e}:{e+1}], v[{x}:{x+1}]", f"v_pk_fma_f32 v[{d+2}:{d+3}], v[{d+2}:{d+3}], v[{e+2}:{e+3}], v[{x+2}:{x+3}]")
            A(f"v_cvt_pk_bf16_f32 v{d}, v{d}, v{d+1}", f"v_cvt_pk_bf16_f32 v{d+1}, v{d+2}, v{d+3}")
            A(f"buffer_store_dwordx2 v[{d}:{d+1}], v{V_OUT}, s[{R_OUT}:{R_OUT+3}], 0 offen offset:{32*t}" + ("", " sc1", " nt", " sc0 sc1")[C["osc"]])
    A(f"s_or_b32 s10, s2, s{S_W}", "s_cmp_lg_u32 s10, 0", "s_cbranch_scc1 L_nogen", f"s_mov_b32 s10, {F_GEN}")
    flag("s10")
    A("L_nogen:")
    if PROF:
        A("s_waitcnt vmcnt(0)"); stamp(A, 18)
        A("s_lshl_b32 s10, s2, 2", f"s_add_u32 s10, s10, s{S_W}", "s_lshl_b32 s10, s10, 8", f"s_add_u32 s10, s10, {WS_PROF}")
        srd_off(A, 20, 12, "s10", 256)
        A("v_lshlrev_b32 v2, 2, v1", "buffer_store_dword v31, v2, s[20:23], 0 offen")
    A("L_end:", "s_endpgm")
    body = A.finish()
    ref = open(f"cdna_kernels/{NAME}.s.ref").read()
    head = [l for l in ref.splitlines() if l.startswith(";") and "@launch" not in l and "Override" not in l and "grid=ceil" not in l][:12]
    txt = "\n".join(head) + "\n; @launch grid=(256,1,1) block=(256,1,1) lds=163840\n" + '.amdgcn_target "amdgcn-amd-amdhsa--gfx950"\n' + body + descriptor(name, 512, 256)
    return txt

if __name__ == "__main__":
    out = sys.argv[1] if len(sys.argv) > 1 else f"cdna_kernels/{NAME}.s"
    cfg = {}
    for a_ in sys.argv[2:]:
        k, v_ = a_.split("="); cfg[k] = int(v_)
    t = gen(cfg)
    open(out, "w").write(t); print("wrote", out, len(t))
```

```python
import sys, os
sys.path.insert(0, os.path.dirname(os.path.abspath(__file__)))
from common import *

ST = 40960; WREG = 10240
PG = 7168; PQ = 6144; SZG = 1024*PG; SZQ = 1024*PQ
F_X, F_H, F_O, F_KV, F_P, F_GEN, F_SIZE = 0, 4096, 8192, 12288, 20480, 65536, 65536+128

AG_TILES = (2, 3, 4, 5, 6, 7)
V_TILES = [t for t in range(20) if t not in AG_TILES]
def accr(t, j):
    if t in AG_TILES: return ('a', (AG_TILES.index(t)*4 + j)*4)
    return ('v', 32 + (V_TILES.index(t)*4 + j)*4)
def acc(t, j):
    k, b = accr(t, j); return f"{k}[{b}:{b+3}]"
def vq(t, j):
    k, b = accr(t, j); assert k == 'v'; return b
def aq(t, j):
    k, b = accr(t, j); assert k == 'a'; return b
def xr(slot, j, kk): b = 96 + slot*32 + (j*2+kk)*4; return f"a[{b}:{b+3}]"
def ar(t, kk, h=None, n=4):
    b = 192 + (t % n)*8 + kk*4
    return f"a[{b}:{b+3}]" if h is None else f"a[{b+2*h}:{b+2*h+1}]"
def wphi(head, par): b = 224 + (head*2+par)*4; return f"a[{b}:{b+3}]"
def q4(k, b): return f"{k}[{b}:{b+3}]"

S_W, S_MB, S_P, S_TYPE, S_KS, S_TAG, S_WR = 3, 14, 15, 16, 17, 18, 19
R_X, R_W, R_ACT, R_KVP, R_FLAG, R_WD, R_WDQ = 20, 24, 44, 48, 52, 56, 60
R_ZP, R_PS, R_XR, R_OUT, R_WO = 20, 24, 28, 32, 36
S_O01, S_O23, S_O4, S_I23, S_I4, S_OX, S_LW, S_CNT, S_RD, S_DL, S_PST, S_NST = range(64, 76)
S_NL = 76; S_ACTB = 78; S_TQ = 80; S_TW0 = 94; S_TW1 = 95
S_GL = 64
V_L, V_L16, V_J, V_W, V_RD, V_W2, V_TAG = 1, 2, 3, 7, 13, 17, 21
V_RD2 = 7
V_OUT = 15
def acc2(t, j): return 32 + (t*4 + j)*4
FR = 160
def sacc(t): return 160 + 4*t
PL = 192; XR = 240
RING = (96, 128, 160, 0, 32)
NS1, NS2 = 14, 16; NT = NS1 + NS2

PROF2 = os.environ.get("PROF", "0") == "2"
if PROF2: PROF = True
P2MAP = {k: i for i, k in enumerate((0, 1, 3, 4, 5, 6, 7, 8, 9, 10, 13, 14, 15, 16, 17, 18))}
def stamp(A, k):
    if PROF2:
        if k not in P2MAP: return
        if k == 0: A("v_mov_b32 v31, 0")
        A("s_memrealtime s[100:101]", "s_waitcnt lgkmcnt(0)")
        if k == 0: A("s_not_b32 s100, s100")
        A(f"v_writelane_b32 v31, s100, {P2MAP[k]}")
    elif PROF: A("s_memrealtime s[100:101]", "s_waitcnt lgkmcnt(0)", f"v_writelane_b32 v31, s100, {k}")

def glu(A, blocks, store):
    for g0, g1, u0, u1, dst, key in blocks:
        for r in (g0, g0+2, g1, g1+2): A(f"v_pk_mul_f32 v[{r}:{r+1}], v[{r}:{r+1}], s[{S_NL}:{S_NL+1}] op_sel_hi:[1,0]")
        for q in (g0, g1):
            for r in range(4): A(f"v_exp_f32 v{q+r}, v{q+r}")
        for r in (g0, g0+2, g1, g1+2): A(f"v_pk_add_f32 v[{r}:{r+1}], v[{r}:{r+1}], 1.0 op_sel_hi:[1,0]")
        for q in (g0, g1):
            for r in range(4): A(f"v_rcp_f32 v{q+r}, v{q+r}")
        for r, u in ((g0, u0), (g0+2, u0+2), (g1, u1), (g1+2, u1+2)): A(f"v_pk_mul_f32 v[{r}:{r+1}], v[{r}:{r+1}], v[{u}:{u+1}]")
        pack2(A, dst, g0, g1)
        store(key, dst)

def gen(cfg=None):
    C = dict(q_pollq=1, q_kv=2, q_sum1=3, q_o=4, q_pollkv=4, ovl=10, flag_stage=18, poll_stage=24, WD=7, cpf=1, osc=0)
    if cfg: C.update(cfg)
    A = Asm(); name = NAME + "_kernel"
    header(A, name)
    A("s_cmp_ge_u32 s2, 256", "s_cbranch_scc1 L_end")
    if C["cpf"]:
        A("s_getpc_b64 s[20:21]", "L_pc:", "s_mov_b32 s22, L_end-L_pc", "s_mov_b32 s23, 0x20000", "s_bfe_u32 s8, s2, 0x30003", "s_lshl_b32 s8, s8, 14",
          "v_lshlrev_b32 v3, 6, v0", "buffer_load_dword v4, v3, s[20:23], s8 offen")
    stamp(A, 0)
    A(f"s_load_dwordx2 s[4:5], s[0:1], {KA_X}", f"s_load_dwordx2 s[12:13], s[0:1], {KA_WS}", f"s_load_dwordx4 s[96:99], s[0:1], {KA_WQKV}",
      f"s_load_dwordx8 s[80:87], s[0:1], {KA_WG}", f"s_load_dwordx2 s[6:7], s[0:1], {KA_WO}")
    A("v_lshrrev_b32 v2, 6, v0", "v_and_b32 v1, 63, v0", f"v_readfirstlane_b32 s{S_W}, v2")
    A(f"s_bfe_u32 s{S_KS}, s2, 0x20001", "s_bfe_u32 s8, s2, 0x30003", f"s_lshl_b32 s9, s{S_KS}, 3", "s_add_u32 s9, s9, s8",
      f"s_and_b32 s{S_MB}, s2, 1", f"s_lshl_b32 s{S_MB}, s{S_MB}, 2", "s_lshr_b32 s79, s2, 6", f"s_add_u32 s{S_MB}, s{S_MB}, s79",
      f"s_lshr_b32 s{S_P}, s9, 1", f"s_and_b32 s{S_TYPE}, s9, 1")
    B = 64
    def L(r): return B + r
    A(f"v_and_b32 v{L(1)}, 7, v0", f"v_bfe_u32 v{L(2)}, v0, 3, 3")
    A(f"v_lshlrev_b32 v{L(4)}, 11, v{L(1)}", f"v_lshl_add_u32 v{L(4)}, v2, 9, v{L(4)}", f"v_lshl_add_u32 v{L(4)}, v{L(2)}, 4, v{L(4)}")
    A(f"s_lshl_b32 s79, s{S_MB}, 5", "s_add_u32 s79, s79, s9")
    A("s_lshl_b32 s88, s79, 14")
    A("s_waitcnt lgkmcnt(0)")
    srd(A, R_ACT, "s4", "s5", 4*MB)
    for i in range(4): A(f"buffer_load_dwordx4 v[{L(8+4*i)}:{L(11+4*i)}], v{L(4)}, s[{R_ACT}:{R_ACT+3}], s88 offen offset:{i*128}")
    srd_off(A, R_FLAG, 12, WS_FLAG, F_SIZE)
    A(f"s_load_dword s{S_TAG}, s[{R_FLAG}:{R_FLAG+1}], {F_GEN}")
    A(f"v_lshlrev_b32 v{L(5)}, 15, v2", f"v_lshl_add_u32 v{L(5)}, v{L(1)}, 4, v{L(5)}", f"v_lshrrev_b32 v{L(6)}, 2, v{L(2)}", f"v_lshl_add_u32 v{L(5)}, v{L(6)}, 10, v{L(5)}",
      f"v_and_b32 v{L(6)}, 3, v{L(2)}", f"v_lshl_add_u32 v{L(5)}, v{L(6)}, 8, v{L(5)}")
    A(f"v_lshlrev_b32 v{L(7)}, 3, v{L(1)}", f"v_add_u32 v{L(7)}, {3*ST+4096}, v{L(7)}", f"v_lshl_add_u32 v{L(6)}, v2, 6, v{L(7)}")
    A("v_bfe_u32 v22, v1, 4, 1", "v_and_b32 v23, 3, v1",
      "v_lshlrev_b32 v24, 1, v22", "v_xor_b32 v24, v24, v23", "v_lshlrev_b32 v24, 4, v24",
      "v_bfe_u32 v25, v1, 2, 2", "v_lshl_add_u32 v26, v22, 3, v25", "v_lshrrev_b32 v27, 4, v1", "v_lshl_add_u32 v28, v27, 3, v25",
      "v_lshrrev_b32 v29, 5, v1", "v_lshl_add_u32 v29, v29, 6, v24")
    A(f"s_lshr_b32 s89, s{S_W}, 1", "s_lshl_b32 s89, s89, 2", f"s_and_b32 s90, s{S_W}, 1", "s_lshl_b32 s88, s90, 4", "s_add_u32 s88, s88, s89")
    A("v_add_u32 v26, s88, v26", "v_add_u32 v28, s89, v28")
    A(f"s_cmp_eq_u32 s{S_TYPE}, 0", f"s_mov_b32 s91, {PG}", f"s_cselect_b32 s88, s91, {PQ}", f"s_cselect_b32 s89, {PQ}, s91")
    A(f"v_mul_lo_u32 v{V_W}, v26, s91", f"v_mul_lo_u32 v{V_W+2}, v26, s88", f"v_mul_lo_u32 v{V_W+4}, v28, s89")
    A(f"v_add_u32 v{V_W}, v{V_W}, v29", f"v_add_u32 v{V_W+2}, v{V_W+2}, v29", f"v_add_u32 v{V_W+4}, v{V_W+4}, v24")
    A(f"s_lshl_b32 s{S_I23}, s88, 6", f"s_lshl_b32 s{S_I4}, s89, 6")
    A("s_lshl_b32 s88, s88, 5", "s_sub_u32 s88, s88, 1024", "s_lshl_b32 s89, s89, 5", "s_sub_u32 s89, s89, 1024")
    A(f"v_add_u32 v{V_W+1}, {32*PG-1024}, v{V_W}", f"v_add_u32 v{V_W+3}, s88, v{V_W+2}", f"v_add_u32 v{V_W+5}, s89, v{V_W+4}")
    A("v_lshlrev_b32 v2, 4, v1")
    A(f"s_mul_i32 s91, s{S_P}, 448")
    A(f"s_bitcmp0_b32 s{S_P}, 0", "s_cselect_b32 s88, 0, 192", "s_cselect_b32 s89, 256, 64", "s_cselect_b32 s92, 384, 0")
    A(f"s_cmp_eq_u32 s{S_TYPE}, 0", "s_cselect_b32 s88, s88, s89", "s_add_u32 s88, s88, s91", "s_add_u32 s92, s92, s91")
    A(f"s_lshl_b32 s91, s{S_P}, 7")
    def wsrd(d, lo, hi, off, size, comp):
        A(f"s_sub_u32 s10, {off}, {comp}" if comp else f"s_mov_b32 s10, {off}")
        A(f"s_ashr_i32 s11, s10, 31", f"s_add_u32 s{d}, {lo}, s10", f"s_addc_u32 s{d+1}, {hi}, s11", f"s_sub_u32 s{d+2}, {size}, s10", f"s_mov_b32 s{d+3}, 0x20000")
    wsrd(R_W, "s80", "s81", "s88", SZG, 0)
    wsrd(R_W+4, "s82", "s83", "s88", SZG, 2048)
    A(f"s_cmp_eq_u32 s{S_TYPE}, 0", "s_cbranch_scc0 L_srd_kv")
    A("s_add_u32 s89, s88, 128")
    wsrd(R_W+8, "s80", "s81", "s89", SZG, 0)
    wsrd(R_W+12, "s82", "s83", "s89", SZG, 2048)
    A("s_lshl_b32 s89, s90, 6", "s_add_u32 s89, s89, s91")
    wsrd(R_W+16, "s96", "s97", "s89", SZQ, 0)
    A(f"s_lshl_b32 s{S_ACTB}, s88, 6", f"s_add_u32 s{S_ACTB}, s{S_ACTB}, 8192")
    A("s_branch L_srd_done")
    A("L_srd_kv:")
    A("s_add_u32 s89, s91, 2048")
    wsrd(R_W+8, "s96", "s97", "s89", SZQ, 0)
    A("s_add_u32 s89, s91, 4096")
    wsrd(R_W+12, "s96", "s97", "s89", SZQ, 2048)
    A("s_cmp_eq_u32 s90, 0", "s_cselect_b32 s94, s80, s82", "s_cselect_b32 s95, s81, s83")
    wsrd(R_W+16, "s94", "s95", "s92", SZG, 0)
    A(f"s_lshr_b32 s{S_ACTB}, s92, 7", f"s_lshl_b32 s{S_ACTB}, s{S_ACTB}, 13", "s_bfe_u32 s89, s92, 0x10006", "s_lshl_b32 s89, s89, 10", f"s_add_u32 s{S_ACTB}, s{S_ACTB}, s89")
    A("L_srd_done:")
    A(f"s_mul_i32 s{S_WR}, s{S_W}, {WREG}", f"s_mov_b32 s{S_LW}, s{S_WR}")
    for r in (S_O01, S_O23, S_O4, S_OX): A(f"s_mov_b32 s{r}, 0")
    def dma_list():
        o = []
        for p in range(10):
            sl, kk = p >> 1, p & 1
            grp = (0, 0, 1, 1, 2)[sl]
            pre = [f"s_add_u32 m0, s{S_LW}, {(p >> 2)*4096}"] if p % 4 == 0 else []
            if p == 0: pre = [f"s_mov_b32 m0, s{S_LW}"]
            o.append((pre, f"buffer_load_dwordx4 v{V_W+grp*2+kk}, s[{R_W+4*sl}:{R_W+4*sl+3}], s{S_O01+grp} offen offset:{(p & 3)*1024} lds"))
        return o
    def dma_post():
        return [f"s_add_u32 s{S_O01}, s{S_O01}, {64*PG}", f"s_add_u32 s{S_O23}, s{S_O23}, s{S_I23}", f"s_add_u32 s{S_O4}, s{S_O4}, s{S_I4}",
                f"s_add_u32 s{S_LW}, s{S_LW}, {ST}", f"s_sub_u32 s10, s{S_LW}, {4*ST}", f"s_cmp_ge_u32 s{S_LW}, {4*ST}", f"s_cselect_b32 s{S_LW}, s10, s{S_LW}"]
    def emit_dma():
        for pre, ins in dma_list(): A(*pre); A(ins)
        A(*dma_post())
    emit_dma()
    A(f"s_lshl_b32 s89, s{S_P}, 12")
    srd_off(A, R_WDQ, 98, "s89", 4096)
    A(f"s_lshl_b32 s89, s{S_W}, 10", f"s_add_u32 m0, s89, {3*ST}")
    A(f"buffer_load_dwordx4 v2, s[{R_WDQ}:{R_WDQ+3}], s89 offen lds")
    emit_dma()
    srd_off(A, R_KVP, 12, WS_XN, 4*MB)
    A("s_lshr_b32 s88, s79, 3", "s_lshl_b32 s88, s88, 17", "s_bfe_u32 s89, s79, 0x20001", "s_lshl_b32 s89, s89, 11", "s_add_u32 s88, s88, s89",
      "s_and_b32 s89, s79, 1", "s_lshl_b32 s89, s89, 7", "s_add_u32 s88, s88, s89")
    A("s_mov_b32 s89, 0xffff0000")
    for i in range(4):
        A(f"s_waitcnt vmcnt({21+3-i})")
        for q in range(4):
            r = L(8 + 4*i + q); d = L(32 + 8*i + 2*q)
            A(f"v_lshlrev_b32 v{d}, 16, v{r}", f"v_and_b32 v{d+1}, s89, v{r}")
    stamp(A, 1)
    def p2(r): return f"v[{L(r)}:{L(r)+1}]"
    def red8(r, t):
        r = L(r); t = L(t)
        A(f"v_add_f32_dpp v{r}, v{r}, v{r} row_ror:8 row_mask:0xf bank_mask:0xf")
        A(f"v_mov_b32 v{t}, v{r}", f"v_permlane16_swap_b32 v{r}, v{t}", f"v_add_f32 v{r}, v{r}, v{t}")
        A(f"v_mov_b32 v{t}, v{r}", f"v_permlane32_swap_b32 v{r}, v{t}", f"v_add_f32 v{r}, v{r}, v{t}")
    A(f"v_pk_add_f32 {p2(24)}, {p2(32)}, {p2(34)}", f"v_pk_add_f32 {p2(26)}, {p2(36)}, {p2(38)}")
    for q in range(2, 8):
        A(f"v_pk_add_f32 {p2(24)}, {p2(24)}, {p2(32+4*q)}", f"v_pk_add_f32 {p2(26)}, {p2(26)}, {p2(34+4*q)}")
    A(f"v_pk_add_f32 {p2(24)}, {p2(24)}, {p2(26)}", f"v_add_f32 v{L(24)}, v{L(24)}, v{L(25)}")
    red8(24, 25)
    A(f"v_mul_f32 v{L(26)}, 0x3b800000, v{L(24)}")
    for q in range(16):
        t = 8 + 2*(q % 8); ac = 28 + 2*(q % 2)
        A(f"v_pk_add_f32 {p2(t)}, {p2(32+2*q)}, {p2(26)} op_sel_hi:[1,0] neg_lo:[0,1] neg_hi:[0,1]")
        if q < 2: A(f"v_pk_mul_f32 {p2(ac)}, {p2(t)}, {p2(t)}")
        else: A(f"v_pk_fma_f32 {p2(ac)}, {p2(t)}, {p2(t)}, {p2(ac)}")
    A(f"v_pk_add_f32 {p2(28)}, {p2(28)}, {p2(30)}", f"v_add_f32 v{L(27)}, v{L(28)}, v{L(29)}")
    red8(27, 25)
    A(f"ds_write_b64 v{L(6)}, {p2(26)}", "s_waitcnt lgkmcnt(0)", "s_barrier")
    for w in range(4): A(f"ds_read_b64 {p2(8+2*w)}, v{L(7)} offset:{64*w}")
    A(f"s_mul_i32 s{S_TAG}, s{S_TAG}, 0x9e3779b1", f"s_add_u32 s{S_TAG}, s{S_TAG}, 0x7f4a7c15", f"v_mov_b32 v{V_TAG}, s{S_TAG}")
    A("s_waitcnt lgkmcnt(0)")
    def V(s):
        import re
        return re.sub(r"\bv(\d+)\b", lambda m: f"v{L(int(m.group(1)))}", s)
    for s_ in ("v_add_f32 v16, v8, v10", "v_add_f32 v17, v12, v14", "v_add_f32 v16, v16, v17", "v_mul_f32 v16, 0x3e800000, v16",
               "v_add_f32 v17, v9, v11", "v_add_f32 v18, v13, v15", "v_add_f32 v17, v17, v18",
               "v_sub_f32 v8, v8, v16", "v_sub_f32 v10, v10, v16", "v_sub_f32 v12, v12, v16", "v_sub_f32 v14, v14, v16",
               "v_mul_f32 v18, v8, v8", "v_fmac_f32 v18, v10, v10", "v_fmac_f32 v18, v12, v12", "v_fmac_f32 v18, v14, v14",
               "v_mul_f32 v17, 0x3a800000, v17", "v_fmac_f32 v17, 0x3e800000, v18"): A(V(s_))
    def rbf(r): A(f"v_cvt_pk_bf16_f32 v{L(r)}, v{L(r)}, v{L(r)}", f"v_lshlrev_b32 v{L(r)}, 16, v{L(r)}")
    rbf(16); rbf(17)
    A(V("v_add_f32 v17, 0x3727c5ac, v17")); rbf(17)
    A(V("v_sqrt_f32 v17, v17")); rbf(17)
    A(V("v_rcp_f32 v17, v17"))
    for i in range(4):
        qs = range(4*i, 4*i+4)
        for q in qs: A(f"v_pk_add_f32 {p2(32+2*q)}, {p2(32+2*q)}, {p2(16)} op_sel_hi:[1,0] neg_lo:[0,1] neg_hi:[0,1]")
        for q in qs: A(f"v_cvt_pk_bf16_f32 v{L(32+2*q)}, v{L(32+2*q)}, v{L(33+2*q)}")
        for q in qs: A(f"v_and_b32 v{L(33+2*q)}, s89, v{L(32+2*q)}", f"v_lshlrev_b32 v{L(32+2*q)}, 16, v{L(32+2*q)}")
        for q in qs: A(f"v_pk_mul_f32 {p2(32+2*q)}, {p2(32+2*q)}, {p2(16)} op_sel:[0,1] op_sel_hi:[1,1]")
        for q in range(4): A(f"v_cvt_pk_bf16_f32 v{L(64+4*i+q)}, v{L(32+8*i+2*q)}, v{L(33+8*i+2*q)}")
        A(f"buffer_store_dwordx4 v[{L(64+4*i)}:{L(67+4*i)}], v{L(5)}, s[{R_KVP}:{R_KVP+3}], s88 offen sc1")
        if i < 3: A("s_add_u32 s88, s88, 8192")
    stamp(A, 2)
    A("s_lshl_b32 s79, s79, 2", f"s_add_u32 s79, s79, s{S_W}", "s_lshl_b32 s79, s79, 2")
    A(f"s_lshl_b32 s88, s{S_KS}, 11", f"v_add_u32 v{V_J}, s88, v2", f"v_xor_b32 v{V_J+1}, 2048, v{V_J}", f"v_xor_b32 v{V_J+2}, 4096, v{V_J}", f"v_xor_b32 v{V_J+3}, 0x1800, v{V_J}")
    A("v_lshlrev_b32 v26, 3, v23", "v_lshl_add_u32 v26, v25, 6, v26", "v_lshl_add_u32 v28, v22, 5, v26",
      "v_lshrrev_b32 v30, 5, v1", f"v_mul_u32_u24 v30, {WREG}, v30", "v_lshl_add_u32 v30, v22, 8, v30",
      f"v_add_u32 v{V_RD}, v30, v28", f"v_xor_b32 v{V_RD+1}, 32, v{V_RD}",
      f"v_lshl_add_u32 v{V_RD+2}, v27, 8, v28", f"v_xor_b32 v{V_RD+3}, 32, v{V_RD+2}")
    A("v_lshl_add_u32 v30, v27, 8, v26", f"v_add_u32 v30, {3*ST}, v30")
    A("v_bfe_u32 v26, v1, 2, 3", "v_lshl_add_u32 v26, v26, 11, v29", f"s_lshl_b32 s88, s{S_W}, 14", "v_add_u32 v26, s88, v26")
    for p in range(4): A(f"v_add_u32 v{V_W2+p}, {(p >> 1)*128 + (p & 1)*65536 - p*1024 + 2048}, v26")
    A("s_lshl_b32 s8, s8, 8")
    wsrd(R_WD, "s84", "s85", "s8", 3584*2048, 2048)
    A("s_mov_b32 s10, s86", "s_mov_b32 s11, s87") if False else None
    A("s_mov_b32 s98, s86", "s_mov_b32 s99, s87")
    A(f"s_lshl_b32 s9, s{S_MB}, 2", f"s_add_u32 s9, s9, s{S_W}")
    A("s_lshl_b32 s88, s9, 17")
    srd_off(A, R_X, 12, "s88", 131072)
    A(f"s_mul_i32 s88, s9, {ACT_GRP}", f"s_add_u32 s88, s88, {WS_ACT}")
    srd_off(A, R_ACT, 12, "s88", ACT_GRP)
    A(f"s_and_b32 s96, s{S_P}, 3", f"s_mul_i32 s97, s{S_KS}, {14*8192}")
    for i in range(4):
        A(f"s_xor_b32 s10, s96, {i}", "s_lshr_b32 s11, s10, 1", f"s_mul_i32 s11, s11, {7*8192}", "s_add_u32 s11, s11, s97", "s_and_b32 s10, s10, 1")
        if i in (0, 2): A(f"s_add_u32 s{S_TQ+12+i//2}, s11, {3*8192}")
        A(f"s_mul_i32 s{S_TQ+2*i}, s10, {5*8192}", f"s_add_u32 s{S_TQ+2*i}, s{S_TQ+2*i}, s11", f"s_add_u32 s{S_TQ+2*i+1}, s{S_TQ+2*i}, 8192",
          f"s_lshl_b32 s10, s10, 14", "s_add_u32 s10, s10, s11", f"s_add_u32 s{S_TQ+8+i}, s10, {2*8192}")
    A(f"s_cmp_eq_u32 s{S_TYPE}, 0", f"s_cselect_b32 s{S_TW0}, s{S_TQ}, s{S_TQ+8}", f"s_cselect_b32 s{S_TW1}, s{S_TQ+1}, s{S_TQ}")
    A(f"s_mov_b32 s{S_NL}, {NLOG2E:#x}", f"s_mov_b32 s{S_NL+1}, {LOG2E:#x}")
    A(f"s_mov_b32 s{S_RD}, 0", f"s_mov_b32 s{S_CNT}, 4", f"s_mov_b32 s{S_PST}, {ST}", f"s_mov_b32 s{S_NST}, {(-3*ST) & 0xffffffff:#x}")
    def flag(soff):
        A("s_mov_b64 exec, 1", f"buffer_store_dword v{V_TAG}, off, s[{R_FLAG}:{R_FLAG+3}], {soff} sc1", "s_mov_b64 exec, -1")
    npoll = [0]
    def pollf(mask, soff, off=0, vt=22):
        lab = f"L_poll{npoll[0]}"; npoll[0] += 1
        A(f"v_and_b32 v{vt}, {mask}, v1", f"v_lshlrev_b32 v{vt}, 2, v{vt}", "s_mov_b32 s10, 0x40000", f"{lab}:")
        A(f"buffer_load_dword v{vt+1}, v{vt}, s[{R_FLAG}:{R_FLAG+3}], {soff} offen offset:{off} sc1", "s_sub_u32 s10, s10, 1", f"s_cbranch_scc1 {lab}_out",
          "s_waitcnt vmcnt(0)", f"v_cmp_ne_u32 vcc, s{S_TAG}, v{vt+1}", f"s_cbranch_vccnz {lab}", f"{lab}_out:")
    A("s_waitcnt vmcnt(0)")
    flag("s79")
    stamp(A, 3)
    A(f"s_mov_b32 s{R_WDQ}, s{R_WD}", f"s_mov_b32 s{R_WDQ+1}, s{R_WD+1}", f"s_cmp_eq_u32 s{S_TYPE}, 0", f"s_cselect_b32 s{R_WDQ+2}, s{R_WD+2}, 0", f"s_mov_b32 s{R_WDQ+3}, 0x20000")
    A(f"s_lshl_b32 s96, s{S_P}, 2", f"s_add_u32 s96, s96, s{S_W}", "s_lshl_b32 s97, s96, 15", f"s_add_u32 s97, s97, {WS_KVP}")
    srd_off(A, R_KVP, 12, "s97", 32768)
    A("s_lshl_b32 s79, s9, 7")
    pollf(31, "s79")
    stamp(A, 4)
    def x_list(slot):
        return [f"buffer_load_dwordx4 {xr(slot, f >> 1, f & 1)}, v{V_J + (f >> 1)}, s[{R_X}:{R_X+3}], s{S_OX} offen offset:{(f & 1)*1024} sc1" for f in range(8)]
    x_post = [f"s_add_u32 s{S_OX}, s{S_OX}, 8192"]
    A(*x_list(0)); A(*x_post); A(*x_list(1)); A(*x_post); emit_dma()
    A("s_barrier")
    def rd(t):
        tt = t % 20
        sl, u, par = tt >> 2, (tt >> 1) & 1, tt & 1
        o = []
        for kk in range(2):
            for h in range(2):
                if sl < 4: o.append(f"ds_read_b64_tr_b16 {ar(t, kk, h)}, v{V_RD+par} offset:{h*2*WREG + (sl*2+kk)*1024 + u*512}")
                else: o.append(f"ds_read_b64_tr_b16 {ar(t, kk, h)}, v{V_RD+2+par} offset:{h*2*WREG + u*WREG + (8+kk)*1024}")
        return o
    for hd in range(2):
        for par in range(2):
            for h in range(2):
                b = 224 + (hd*2+par)*4 + 2*h
                A(f"ds_read_b64_tr_b16 a[{b}:{b+1}], v30 offset:{hd*2048 + h*1024 + par*32}")
    A(*rd(0)); A(*rd(1))
    if PROF:
        A("s_waitcnt vmcnt(18)"); stamp(A, 5)

    def w2_ops(R, soff_pre, slot, tag):
        o = []
        for p in range(4):
            pre = [f"s_add_u32 m0, s{S_WR}, {(slot >> 1)*ST + (slot & 1)*4096}", soff_pre] if p == 0 else []
            o.append((pre, f"buffer_load_dwordx4 v{V_W2+p}, s[{R}:{R+3}], s11 offen offset:{p*1024} lds", tag))
        return o

    def stage(xs, first=False, tail=None, vm=None):
        fill = {}
        def put(i, ins): fill.setdefault(i, []).extend(ins if isinstance(ins, list) else [ins])
        if tail is None:
            for n, ins in enumerate(x_list((xs+2) % 3)): put(8*(1+n)+3, ins)
            put(8*8+5, x_post)
            for n, (pre, ins) in enumerate(dma_list()):
                put(8*(9+n)+1, pre); put(8*(9+n)+3, ins)
            dp = dma_post()
            put(8*18+5, dp[0]); put(8*18+7, dp[1]); put(8*19+1, dp[2]); put(8*19+3, dp[3:5]); put(8*19+5, dp[5:7])
        else:
            for n, (pre, ins, tag) in enumerate(tail[1]):
                put(8*(1+n)+1, pre); put(8*(1+n)+3, ("vm", ins, tag))
        last = tail is not None and tail[0] == 15
        put(8*13+5, [f"s_add_u32 s{S_RD}, s{S_RD}, 1", f"s_and_b32 s{S_RD}, s{S_RD}, 3"])
        put(8*13+7, [f"s_cselect_b32 s{S_DL}, s{S_PST}, s{S_NST}"])
        put(8*15+5, f"v_add_u32 v{V_RD}, s{S_DL}, v{V_RD}"); put(8*15+7, f"v_add_u32 v{V_RD+1}, s{S_DL}, v{V_RD+1}")
        if not last:
            put(8*18+1, f"v_add_u32 v{V_RD+2}, s{S_DL}, v{V_RD+2}"); put(8*19+7, f"v_add_u32 v{V_RD+3}, s{S_DL}, v{V_RD+3}")
        for t in range(20):
            lg = 4 if not (last and t == 19) else 0
            if tail is None:
                if t == 0: A(f"s_waitcnt vmcnt({18 if first else 28}) lgkmcnt(4)")
                elif t == 1: A("s_waitcnt lgkmcnt(4)" if first else "s_waitcnt vmcnt(18) lgkmcnt(4)", "s_barrier")
                else: A("s_waitcnt lgkmcnt(4)")
            else:
                n = tail[0]
                if t == 0: A(vm.wait(("X", n)) + " lgkmcnt(4)")
                elif t == 1: A((vm.wait(("W1", n+1)) + " lgkmcnt(4)") if n < 15 else "s_waitcnt lgkmcnt(4)", "s_barrier")
                else: A(f"s_waitcnt lgkmcnt({lg})")
            if not (last and t >= 18):
                r = rd(t+2)
                for q in range(4): put(8*t+2*q, r[q])
            seen = set()
            for q, (j, kk) in enumerate(snake(t)):
                c = "0" if (first and j not in seen) else acc(t, j)
                seen.add(j)
                A(f"v_mfma_f32_16x16x32_bf16 {acc(t, j)}, {ar(t, kk)}, {xr(xs, j, kk)}, {c}")
                for x in fill.get(8*t+q, []):
                    if isinstance(x, tuple): vm.issue(x[1], x[2])
                    else: A(x)
    stage(0, first=True)
    A("L_loop:")
    stage(1); stage(2); stage(0)
    A(f"s_sub_u32 s{S_CNT}, s{S_CNT}, 1", f"s_cmp_lg_u32 s{S_CNT}, 0", "s_cbranch_scc1 L_loop")
    vm = VM(A)
    vm.ops = [("X", 13)]*8 + [("W1", 14)]*10 + [("X", 14)]*8 + [("W1", 15)]*10
    A(f"s_and_b32 s10, s{S_MB}, 3", f"s_lshl_b32 s10, s10, 2", f"s_add_u32 s10, s10, s{S_W}", f"s_mul_i32 s96, s10, {56*2048}", f"s_mul_i32 s97, s{S_KS}, {896*2048}",
      "s_add_u32 s96, s96, s97", f"s_add_u32 s97, s96, {24*2048}", "s_lshl_b32 s79, s10, 17")
    A("v_lshrrev_b32 v22, 1, v1", "v_lshlrev_b32 v22, 11, v22", "v_and_b32 v23, 1, v1", "v_lshl_add_u32 v22, v23, 7, v22")
    pf = [([], f"buffer_load_dword v0, v22, s[{R_WD}:{R_WD+3}], s96 offen offset:2048", "PF"), ([], f"buffer_load_dword v0, v22, s[{R_WD}:{R_WD+3}], s97 offen offset:2048", "PF")]
    def tw(sreg): return f"s_lshl_b32 s11, s{sreg}, 4"
    t13 = [([], i, ("X", 15)) for i in x_list(0)] + w2_ops(R_WD, tw(S_TW0), 0, ("W", 0)) + w2_ops(R_WD, tw(S_TW1), 1, ("W", 1)) + pf
    stage(1, tail=(13, t13), vm=vm)
    stage(2, tail=(14, w2_ops(R_WDQ, tw(S_TQ+2), 2, ("W", 2)) + w2_ops(R_WDQ, tw(S_TQ+3), 3, ("W", 3))), vm=vm)
    stage(0, tail=(15, w2_ops(R_WDQ, tw(S_TQ+4), 4, ("W", 4)) + w2_ops(R_WDQ, tw(S_TQ+5), 5, ("W", 5))), vm=vm)
    stamp(A, 6)
    A(f"s_lshl_b32 s{S_GL}, s9, 7")
    A(f"s_lshl_b32 s96, s{S_P}, 2", f"s_add_u32 s96, s96, s{S_W}", "s_lshl_b32 s97, s96, 10", f"s_add_u32 s97, s97, {WS_ZP}")
    srd_off(A, R_ZP, 12, "s97", 1024)
    A(f"s_lshl_b32 s65, s96, 7", f"s_add_u32 s65, s65, {F_KV}")
    wsrd(R_WO, "s6", "s7", "s8", 1024*2048, 2048)
    A(f"v_mov_b32 v{V_RD2}, v{V_RD}", f"v_mov_b32 v{V_RD2+1}, v{V_RD+1}")
    for b in range(1, 4):
        A(f"v_add_u32 v{V_RD2+2*b}, {b*ST}, v{V_RD2}", f"v_add_u32 v{V_RD2+2*b+1}, {b*ST}, v{V_RD2+1}")
    A(f"s_lshl_b32 s66, s{S_P}, 2", f"s_add_u32 s66, s66, s{S_GL}")
    A(f"s_lshl_b32 s67, s{S_KS}, 4", f"s_add_u32 s67, s67, s{S_GL}", f"s_add_u32 s67, s67, {F_H}")

    def mk_store(vm):
        def hstore(soff):
            def st(key, q):
                j, u = key
                vm.issue(f"buffer_store_dwordx4 v[{q}:{q+3}], v{V_J+j}, s[{R_ACT}:{R_ACT+3}], s{soff} offen offset:{u*1024} sc1", "HS")
            return st
        return hstore
    def aread(dst, src):
        for r in range(4): A(f"v_accvgpr_read_b32 v{dst+r}, a{src+r}")
    def feat(items, normalize):
        for fq, hd, p0, ep, sp in items:
            for par in range(2):
                A(f"v_mfma_f32_16x16x32_bf16 v[{p0+4*par}:{p0+4*par+3}], {wphi(hd, par)}, v[{fq}:{fq+3}], 0")
        for fq, hd, p0, ep, sp in items:
            A(f"v_max3_f32 v{sp}, v{p0}, v{p0+1}, v{p0+2}", f"v_max3_f32 v{sp+1}, -v{p0}, -v{p0+1}, -v{p0+2}",
              f"v_max3_f32 v{sp}, v{sp}, v{p0+3}, v{p0+4}", f"v_max3_f32 v{sp+1}, v{sp+1}, -v{p0+3}, -v{p0+4}",
              f"v_max3_f32 v{sp}, v{sp}, v{p0+5}, v{p0+6}", f"v_max3_f32 v{sp+1}, v{sp+1}, -v{p0+5}, -v{p0+6}",
              f"v_max_f32 v{sp}, v{sp}, v{p0+7}", f"v_max_f32_e64 v{sp+1}, v{sp+1}, -v{p0+7}")
        groups = [(items[i][4], items[i+1][4]) for i in range(0, len(items), 2)]
        xlane_reduce(A, groups, "v_max_f32", lambda r: f"v_mul_f32 v{r}, s{S_NL}, v{r}")
        for fq, hd, p0, ep, sp in items:
            for i in range(0, 8, 2):
                A(f"v_pk_fma_f32 v[{ep+i}:{ep+i+1}], v[{p0+i}:{p0+i+1}], s[{S_NL}:{S_NL+1}], v[{sp}:{sp+1}] op_sel:[0,1,0] op_sel_hi:[1,1,0]")
            for i in range(0, 8, 2):
                A(f"v_pk_fma_f32 v[{p0+i}:{p0+i+1}], v[{p0+i}:{p0+i+1}], s[{S_NL}:{S_NL+1}], v[{sp}:{sp+1}] op_sel:[0,0,1] op_sel_hi:[1,0,1]")
            for i in range(8): A(f"v_exp_f32 v{ep+i}, v{ep+i}")
            for i in range(8): A(f"v_exp_f32 v{p0+i}, v{p0+i}")
        if normalize:
            for fq, hd, p0, ep, sp in items:
                A(f"v_pk_add_f32 v[{fq}:{fq+1}], v[{ep}:{ep+1}], v[{ep+2}:{ep+3}]", f"v_pk_add_f32 v[{fq+2}:{fq+3}], v[{p0}:{p0+1}], v[{p0+2}:{p0+3}]",
                  f"v_pk_add_f32 v[{fq}:{fq+1}], v[{fq}:{fq+1}], v[{ep+4}:{ep+5}]", f"v_pk_add_f32 v[{fq+2}:{fq+3}], v[{fq+2}:{fq+3}], v[{p0+4}:{p0+5}]",
                  f"v_pk_add_f32 v[{fq}:{fq+1}], v[{fq}:{fq+1}], v[{ep+6}:{ep+7}]", f"v_pk_add_f32 v[{fq+2}:{fq+3}], v[{fq+2}:{fq+3}], v[{p0+6}:{p0+7}]",
                  f"v_add_f32 v{sp}, v{fq}, v{fq+1}", f"v_add_f32 v{sp+1}, v{fq+2}, v{fq+3}")
            xlane_reduce(A, groups, "v_add_f32", lambda r: f"v_rcp_f32 v{r}, v{r}")
            for fq, hd, p0, ep, sp in items:
                for i in range(0, 8, 2):
                    A(f"v_pk_mul_f32 v[{ep+i}:{ep+i+1}], v[{ep+i}:{ep+i+1}], v[{sp}:{sp+1}] op_sel_hi:[1,0]")
                for i in range(0, 8, 2):
                    A(f"v_pk_mul_f32 v[{p0+i}:{p0+i+1}], v[{p0+i}:{p0+i+1}], v[{sp}:{sp+1}] op_sel:[0,1]")

    def rd2(n, t, nring):
        sl, u, par = t >> 2, (t >> 1) & 1, t & 1
        s_ = n % 8
        return [f"ds_read_b64_tr_b16 {ar(t, kk, h, nring)}, v{V_RD2 + 2*(s_ >> 1) + par} offset:{(s_ & 1)*4096 + h*2*WREG + (sl*2+kk)*1024 + u*512}"
                for kk in range(2) for h in range(2)]
    class P1:
        def __init__(s, vm, order, own, nw):
            s.vm = vm; s.order = order; s.own = own; s.nw = nw; s.na = len(own); s.alim = len(own)
            s.ring = {}; s.rnext = 0
        def wops(s, n):
            if n < NS1: return w2_ops(R_WD, tw(S_TQ + s.order[n]), n % 8, ("W", n))
            return w2_ops(R_WO, f"s_mov_b32 s11, {(n-NS1)*131072}", n % 8, ("W", n))
        def aops(s, n):
            b = RING[(n-1) % 5]; s.ring[n] = b
            if n < NS1:
                return [([], f"buffer_load_dwordx4 a[{b+4*f}:{b+4*f+3}], v{V_J + (f >> 1)}, s[{R_ACT}:{R_ACT+3}], s{S_TQ + s.order[n]} offen offset:{(f & 1)*1024} sc1", ("A", n)) for f in range(8)]
            o = []
            for f in range(8):
                pre = [f"s_mov_b32 s10, {(56 + (n-NS1)*4 + (f >> 1))*8192}"] if f % 2 == 0 else []
                o.append((pre, f"buffer_load_dwordx4 a[{b+4*f}:{b+4*f+3}], v{V_J}, s[{R_ACT}:{R_ACT+3}], s10 offen offset:{(f & 1)*1024} sc1", ("A", n)))
            return o
        def more_acts(s, cur, cap=99):
            o = []
            lo = max(cur, len(s.own))
            while s.na < s.alim and s.na < lo + 5 and cap > 0:
                o += s.aops(s.na); s.na += 1; cap -= 1
            return o
        def more_w(s, cur, wlim, cap=2):
            o = []
            while s.nw < min(NT, wlim) and s.nw <= cur - 1 + 8 and cap > 0:
                o += s.wops(s.nw); s.nw += 1; cap -= 1
            return o
        def emit(s, ops):
            for pre, ins, tag in ops:
                A(*pre); s.vm.issue(ins, tag)
        def bfrag(s, n, j, kk):
            if n < len(s.own): return q4('v', s.own[n][(j, kk)])
            return q4('a', s.ring[n] + (j*2+kk)*4)
        def stage(s, n):
            ops = s.more_acts(n, 2) + s.more_w(n, C["ovl"] + 8)
            fill = {}
            pos = [9 + 2*((54*i//max(len(ops), 1))//2) for i in range(len(ops))]
            for i, o in zip(pos, ops): fill.setdefault(i, []).append(o)
            for t in range(8):
                if t == 0 and n >= len(s.own): A(s.vm.wait(("A", n)) + " lgkmcnt(4)")
                elif t == 1: A(s.vm.wait(("W", n+1)) + " lgkmcnt(4)", "s_barrier")
                else: A("s_waitcnt lgkmcnt(4)")
                r = rd2(n, t+2, 4) if t+2 < 8 else rd2(n+1, t+2-8, 4)
                seen = set()
                for q, (j, kk) in enumerate(snake(t)):
                    b = acc2(t, j)
                    c = "0" if (n == 0 and j not in seen) else f"v[{b}:{b+3}]"
                    seen.add(j)
                    A(f"v_mfma_f32_16x16x32_bf16 v[{b}:{b+3}], {ar(t, kk)}, {s.bfrag(n, j, kk)}, {c}")
                    if q % 2 == 0: A(r[q//2])
                    s.emit(fill.get(8*t+q, []))
    def wo_prefetch(vm):
        A("v_lshrrev_b32 v22, 1, v1", "v_lshlrev_b32 v22, 11, v22", "v_and_b32 v23, 1, v1", "v_lshl_add_u32 v22, v23, 7, v22", f"s_add_u32 s10, s79, {32*2048}")
        vm.issue(f"buffer_load_dword v0, v22, s[{R_WO}:{R_WO+3}], s79 offen offset:2048", "PF")
        vm.issue(f"buffer_load_dword v0, v22, s[{R_WO}:{R_WO+3}], s10 offen offset:2048", "PF")
    def o_poll(p):
        pollf(15, f"s{S_GL}", 0) if False else None
        A(f"s_add_u32 s11, s{S_GL}, {F_O}")
        pollf(15, "s11")
        p.alim = NS1 + 4

    A(f"s_cmp_eq_u32 s{S_TYPE}, 0", "s_cbranch_scc1 L_Q")
    vk = VM(A); vk.ops = list(vm.ops); hst = mk_store(vk)
    A("v_and_b32 v15, 15, v1", "v_bfe_u32 v16, v1, 1, 2", "v_lshrrev_b32 v30, 4, v1", "v_xor_b32 v16, v16, v30",
      "v_lshlrev_b32 v15, 6, v15", "v_lshl_add_u32 v15, v16, 4, v15", f"v_add_u32 v15, s{S_WR}, v15", f"v_add_u32 v15, {ST}, v15", f"v_add_u32 v16, {ST}, v15")
    for hd in range(2):
        for j in range(4): pack2(A, vq(12+2*hd, j), vq(12+2*hd, j), vq(13+2*hd, j))
    A("s_waitcnt vmcnt(0)")
    for hd in range(2):
        for j in range(4):
            q = vq(12+2*hd, j)
            A(f"ds_write_b128 v15, v[{q}:{q+3}] offset:{hd*4096 + j*1024}")
    for hd in range(2):
        for j in range(4): pack2(A, vq(8+2*hd, j), vq(8+2*hd, j), vq(9+2*hd, j))
    A("s_waitcnt lgkmcnt(0)")
    T12 = vq(12, 0)
    for hd in range(2):
        items = [(vq(8+2*hd, j), hd, T12+16*j, T12+16*j+8, 22+2*j) for j in range(4)]
        feat(items, True)
        if hd == 1: A("s_barrier")
        for j, (fq, _, p0, ep, sp) in enumerate(items):
            d0 = vq(9+2*hd, j)
            pack2(A, d0, ep, ep+4); pack2(A, fq, p0, p0+4)
            A(f"ds_write_b128 v16, v[{d0}:{d0+3}] offset:{hd*ST + j*1024}", f"ds_write_b128 v16, v[{fq}:{fq+3}] offset:{hd*ST + 4096 + j*1024}")
    A("v_lshrrev_b32 v22, 2, v1", "v_bfe_u32 v23, v1, 3, 2", "v_and_b32 v24, 3, v1", "v_xor_b32 v23, v23, v24",
      "v_lshlrev_b32 v22, 6, v22", "v_lshl_add_u32 v22, v23, 4, v22")
    A(f"s_lshr_b32 s96, s{S_W}, 1", f"s_mul_i32 s97, s96, {ST}", f"s_and_b32 s10, s{S_W}, 1", "s_lshl_b32 s10, s10, 12", "s_add_u32 s97, s97, s10", f"s_add_u32 s97, s97, {2*ST}",
      "s_lshl_b32 s96, s96, 12", f"s_add_u32 s96, s96, {ST}")
    A("v_add_u32 v23, s96, v22", "v_add_u32 v22, s97, v22")
    A("v_mov_b32 v24, 0x3f803f80", "v_mov_b32 v25, v24", "v_mov_b32 v26, v24", "v_mov_b32 v27, v24")
    A("s_waitcnt lgkmcnt(0)", "s_barrier")
    stamp(A, 7)
    KVA = T12
    def kvrd(kb):
        o = []
        b = 96 + kb*16
        for m, vr in ((0, 22), (1, 23)):
            for par in range(2):
                for h in range(2):
                    r = b + m*8 + par*4 + 2*h
                    o.append(f"ds_read_b64_tr_b16 a[{r}:{r+1}], v{vr} offset:{(kb >> 1)*WREG + (kb & 1)*2048 + h*1024 + 8*par}")
        return o
    A(*kvrd(0))
    for kb in range(8):
        if kb + 1 < 8: A(*kvrd(kb+1)); A("s_waitcnt lgkmcnt(8)")
        else: A("s_waitcnt lgkmcnt(0)", "s_barrier")
        b = 96 + kb*16
        for fp in range(2):
            for dp in range(2):
                d = KVA + (dp*2+fp)*4
                A(f"v_mfma_f32_16x16x32_bf16 v[{d}:{d+3}], a[{b+fp*4}:{b+fp*4+3}], a[{b+8+dp*4}:{b+8+dp*4+3}], " + ("0" if kb == 0 else f"v[{d}:{d+3}]"))
            d = KVA + 16 + fp*4
            A(f"v_mfma_f32_16x16x32_bf16 v[{d}:{d+3}], a[{b+fp*4}:{b+fp*4+3}], v[24:27], " + ("0" if kb == 0 else f"v[{d}:{d+3}]"))
    A(f"s_lshl_b32 s96, s{S_MB}, 12", f"s_lshl_b32 s97, s{S_MB}, 7", f"s_lshl_b32 s10, s{S_MB}, 2", "s_add_u32 s65, s65, s10")
    A("v_and_b32 v28, 48, v1")
    for q in range(4):
        vk.issue(f"buffer_store_dwordx4 v[{KVA+4*q}:{KVA+4*q+3}], v2, s[{R_KVP}:{R_KVP+3}], s96 offen offset:{q*1024} sc1", "KS")
    A("s_mov_b32 exec_lo, 0x00010001", "s_mov_b32 exec_hi, 0x00010001")
    for fp in range(2):
        vk.issue(f"buffer_store_dwordx4 v[{KVA+16+4*fp}:{KVA+19+4*fp}], v28, s[{R_ZP}:{R_ZP+3}], s97 offen offset:{fp*64} sc1", "KS")
    A("s_mov_b64 exec, -1")
    own_kv = [{(j, kk): 192 + (kk*4+j)*4 for j in range(4) for kk in range(2)}]
    pk = P1(vk, [8] + list(range(8)) + [9, 10, 11, 12, 13], own_kv, 2)
    glu(A, [(vq(16, j), vq(17, j), vq(18, j), vq(19, j), vq(18, j), (j, 0)) for j in range(2)], hst(S_ACTB))
    A(vk.wait("KS")); flag("s65")
    stamp(A, 8)
    pollf(3, "s67"); pk.alim = 9
    stamp(A, 9)
    pk.emit(pk.more_acts(0, 3))
    pk.emit(pk.more_w(0, 99, 3))
    glu(A, [(vq(16, j), vq(17, j), vq(18, j), vq(19, j), vq(18, j), (j, 0)) for j in range(2, 4)], hst(S_ACTB))
    T8 = vq(8, 0)
    for j in range(4): aread(T8+8*j, aq(4, j)); aread(T8+8*j+4, aq(5, j))
    glu(A, [(vq(0, j), vq(1, j), T8+8*j, T8+8*j+4, own_kv[0][(j, 0)], (j, 0)) for j in range(4)], hst(S_TW0))
    for j in range(4):
        b = T8 + 32 + 16*j
        aread(b, aq(2, j)); aread(b+4, aq(3, j)); aread(b+8, aq(6, j)); aread(b+12, aq(7, j))
    glu(A, [(T8+32+16*j, T8+36+16*j, T8+40+16*j, T8+44+16*j, own_kv[0][(j, 1)], (j, 1)) for j in range(4)], hst(S_TW0))
    A(*rd2(0, 0, 4)); A(*rd2(0, 1, 4))
    wo_prefetch(vk)
    stamp(A, 10)
    for n in range(NS1):
        if n == 1:
            A(vk.wait("HS"), f"s_add_u32 s11, s66, {F_H + 64}"); flag("s11")
        if n == 4:
            pollf(3, "s67", 64); pk.alim = NS1
        if n == C["ovl"]: o_poll(pk)
        pk.stage(n)
    A("s_branch L_P2")
    A("L_Q:")
    vqm = VM(A); vqm.ops = list(vm.ops); hst = mk_store(vqm)
    ownA = {(j, kk): (vq(17, j) if kk == 0 else vq(19, j)) for j in range(4) for kk in range(2)}
    ownB = {(j, kk): (vq(15, j) if kk == 0 else vq(14, j)) for j in range(4) for kk in range(2)}
    pq = P1(vqm, list(range(14)), [ownA, ownB], 6)
    glu(A, [(vq(8+2*u, j), vq(9+2*u, j), vq(12+2*u, j), vq(13+2*u, j), ownB[(j, u)], (j, u)) for u in (1, 0) for j in range(4)], hst(S_ACTB))
    for hd in range(2):
        for j in range(4): pack2(A, vq(16+2*hd, j), vq(16+2*hd, j), vq(17+2*hd, j))
    for j in range(4): aread(T8+8*j, aq(4, j)); aread(T8+8*j+4, aq(5, j))
    glu(A, [(vq(0, j), vq(1, j), T8+8*j, T8+8*j+4, ownA[(j, 0)], (j, 0)) for j in range(4)], hst(S_TW0))
    for j in range(4):
        b = T8 + 32 + 16*j
        aread(b, aq(2, j)); aread(b+4, aq(3, j)); aread(b+8, aq(6, j)); aread(b+12, aq(7, j))
    glu(A, [(T8+32+16*j, T8+36+16*j, T8+40+16*j, T8+44+16*j, ownA[(j, 1)], (j, 1)) for j in range(4)], hst(S_TW0))
    stamp(A, 7)
    def eq(hd, sg, j): return (64 if hd == 0 else 224) + (sg*4+j)*4
    for hd in range(2):
        items = [(vq(16+2*hd, j), hd, 32+16*j, 32+16*j+8, 22+2*j) for j in range(4)]
        feat(items, False)
        for j, (fq, _, p0, ep, sp) in enumerate(items):
            pack2(A, ep, ep, ep+4); pack2(A, p0, p0, p0+4)
            for r in range(4): A(f"v_accvgpr_write_b32 a{eq(hd, 0, j)+r}, v{ep+r}")
            for r in range(4): A(f"v_accvgpr_write_b32 a{eq(hd, 1, j)+r}, v{p0+r}")
        if hd == 0:
            A("s_waitcnt vmcnt(0)", f"s_add_u32 s11, s66, {F_H}"); flag("s11")
    A("s_barrier")
    A(*rd2(0, 0, 4)); A(*rd2(0, 1, 4))
    pq.emit(pq.more_w(0, 99, 2))
    wo_prefetch(vqm)
    stamp(A, 8)
    LB = 192
    def kv_batch(b):
        for m in range(4):
            A(f"s_mov_b32 s10, {(4*b+m)*4096}")
            for q in range(4):
                r = LB + m*16 + q*4
                vqm.issue(f"buffer_load_dwordx4 v[{r}:{r+3}], v2, s[{R_KVP}:{R_KVP+3}], s10 offen offset:{q*1024} sc1", ("KV", b))
    def ev_kv():
        stamp(A, 9)
        pollf(7, "s65")
        stamp(A, 10)
        vqm.issue(f"buffer_load_dwordx4 v[24:27], v2, s[{R_ZP}:{R_ZP+3}], 0 offen sc1", "Z")
        kv_batch(0)
    def ev_sum1():
        A(vqm.wait(("KV", 0)))
        for i in range(0, 16, 2): A(f"v_pk_add_f32 v[{FR+i}:{FR+i+1}], v[{LB+i}:{LB+i+1}], v[{LB+16+i}:{LB+16+i+1}]")
        for i in range(0, 16, 2): A(f"v_pk_add_f32 v[{FR+16+i}:{FR+16+i+1}], v[{LB+32+i}:{LB+32+i+1}], v[{LB+48+i}:{LB+48+i+1}]")
        kv_batch(1)
        for i in range(0, 16, 2): A(f"v_pk_add_f32 v[{FR+i}:{FR+i+1}], v[{FR+i}:{FR+i+1}], v[{FR+16+i}:{FR+16+i+1}]")
        for r in range(24, 28): A(f"v_add_f32_dpp v{r}, v{r}, v{r} row_ror:8 row_mask:0xf bank_mask:0xf")
        t = FR + 16
        for r in range(4): A(f"v_mov_b32 v{t+r}, v{24+r}")
        for r in range(4): A(f"v_permlane16_swap_b32 v{24+r}, v{t+r}")
        for r in range(4): A(f"v_add_f32 v{24+r}, v{24+r}, v{t+r}")
        for r in range(4): A(f"v_mov_b32 v{t+r}, v{24+r}")
        for r in range(4): A(f"v_permlane32_swap_b32 v{24+r}, v{t+r}")
        for r in range(4): A(f"v_add_f32 v{24+r}, v{24+r}, v{t+r}")
        A("v_and_b32 v22, 3, v1", "v_lshlrev_b32 v22, 4, v22", "v_bfe_u32 v23, v1, 2, 1", "v_lshl_add_u32 v22, v23, 3, v22",
          "v_and_b32 v23, 7, v1", "v_lshlrev_b32 v23, 3, v23", "v_add_u32 v23, 64, v23", "v_and_b32 v28, 8, v1", "v_cmp_eq_u32 vcc, 0, v28",
          "v_cndmask_b32 v22, v23, v22, vcc", f"v_add_u32 v22, s{S_WR}, v22")
        A("v_cvt_pk_bf16_f32 v24, v24, v25", "v_cvt_pk_bf16_f32 v25, v26, v27", "v_mov_b32 v26, 0x3f803f80",
          "v_cndmask_b32 v24, v26, v24, vcc", "v_cndmask_b32 v25, v26, v25, vcc")
        A(f"ds_write_b64 v22, v[24:25] offset:{ST + 8192}", "s_waitcnt lgkmcnt(0)")
    def ev_o():
        stamp(A, 11)
        A(vqm.wait(("KV", 1)))
        for m in range(4):
            for i in range(0, 16, 2): A(f"v_pk_add_f32 v[{FR+i}:{FR+i+1}], v[{FR+i}:{FR+i+1}], v[{LB+16*m+i}:{LB+16*m+i+1}]")
        A(f"v_add_u32 v22, s{S_WR}, v2")
        for dp in range(2):
            pack2(A, FR+16+4*dp, FR+8*dp, FR+8*dp+4)
            A(f"ds_write_b128 v22, v[{FR+16+4*dp}:{FR+19+4*dp}] offset:{8192 + dp*1024}")
        A("v_lshrrev_b32 v22, 4, v1", "v_lshlrev_b32 v22, 4, v22", "v_and_b32 v23, 3, v1", "v_cmp_eq_u32 vcc, 1, v23", "v_mov_b32 v23, 64",
          "v_cndmask_b32 v22, v22, v23, vcc", f"v_add_u32 v22, {ST}, v22")
        A(f"s_lshl_b32 s96, s{S_P}, 13", f"s_add_u32 s96, s96, {56*8192}", "s_mov_b32 s97, 0x358637bd")
        A("s_waitcnt lgkmcnt(0)", "s_barrier")
        FG = FR
        for wq in range(4):
            b = FG + wq*12
            A(f"ds_read_b128 v[{b}:{b+3}], v2 offset:{wq*WREG+8192}", f"ds_read_b128 v[{b+4}:{b+7}], v2 offset:{wq*WREG+8192+1024}",
              f"ds_read_b128 v[{b+8}:{b+11}], v22 offset:{wq*WREG+8192}")
        def mm(hd, j, o):
            for sg in range(2):
                b = FG + (hd*2+sg)*12
                e = q4('a', eq(hd, sg, j))
                A(f"v_mfma_f32_16x16x32_bf16 v[{o+16+4*sg}:{o+19+4*sg}], v[{b+8}:{b+11}], {e}, 0")
            for sg in range(2):
                b = FG + (hd*2+sg)*12
                e = q4('a', eq(hd, sg, j))
                for dp in range(2):
                    A(f"v_mfma_f32_16x16x32_bf16 v[{o+8*sg+4*dp}:{o+8*sg+4*dp+3}], v[{b+4*dp}:{b+4*dp+3}], {e}, 0")
        def fin(hd, j, o):
            zp = o+16; zm = o+20
            A(f"v_mul_f32 v{zp+2}, s97, v{zp+1}", f"v_add_f32 v{zp+2}, v{zp+2}, v{zp}", f"v_mul_f32 v{zp+2}, v{zp+2}, v{zm+1}",
              f"v_fmac_f32 v{zp+2}, v{zm}, v{zp+1}", f"v_rcp_f32 v{zp+2}, v{zp+2}")
            A(f"v_mul_f32 v{zm+2}, v{zm+1}, v{zp+2}", f"v_mul_f32 v{zm+3}, v{zp+1}, v{zp+2}")
            for i in range(0, 8, 2):
                A(f"v_pk_mul_f32 v[{o+i}:{o+i+1}], v[{o+i}:{o+i+1}], v[{zm+2}:{zm+3}] op_sel_hi:[1,0]")
            for i in range(0, 8, 2):
                A(f"v_pk_fma_f32 v[{o+i}:{o+i+1}], v[{o+8+i}:{o+8+i+1}], v[{zm+2}:{zm+3}], v[{o+i}:{o+i+1}] op_sel:[0,1,0]")
            pack2(A, 24, o, o+4)
            vqm.issue(f"buffer_store_dwordx4 v[24:27], v{V_J+j}, s[{R_ACT}:{R_ACT+3}], s96 offen offset:{hd*1024} sc1", "OS")
        A("s_waitcnt lgkmcnt(0)")
        seq = [(hd, j) for hd in range(2) for j in range(4)]
        mm(*seq[0], 208)
        for i, (hd, j) in enumerate(seq):
            if i + 1 < 8: mm(*seq[i+1], 208 + 24*((i+1) & 1))
            fin(hd, j, 208 + 24*(i & 1))
        stamp(A, 12)
    for n in range(NS1):
        if n == C["q_pollq"]:
            pollf(3, "s67"); pq.alim = 8
            pq.emit(pq.more_acts(n, 2))
        if n == C["q_kv"]: ev_kv()
        if n == C["q_sum1"]: ev_sum1()
        if n == C["q_o"]: ev_o()
        if n == C["q_pollkv"]:
            pollf(3, "s67", 64); pq.alim = NS1
            A(f"s_add_u32 s11, s66, {F_O}"); flag("s11")
        if n == C["ovl"]: o_poll(pq)
        pq.stage(n)
    A("L_P2:")
    stamp(A, 13)
    assert pq.nw == pk.nw and pq.na == pk.na, (pq.nw, pk.nw, pq.na, pk.na)
    ringq = [pq.ring.get(n) for n in range(NS1, NS1+4)]; ringk = [pk.ring.get(n) for n in range(NS1, NS1+4)]
    assert ringq == ringk, (ringq, ringk)
    k = 0
    while k < min(len(vqm.ops), len(vk.ops)) and vqm.ops[-1-k] == vk.ops[-1-k]: k += 1
    v2m = VM(A); suffix = vqm.ops[len(vqm.ops)-k:]
    older = [t for t in set(vqm.ops) | set(vk.ops)]
    v2m.ops = older + suffix
    class VM2(VM):
        def count_after(s, tags):
            return min(VM.count_after(s, tags), len(s.ops) - len(older))
    v2m.__class__ = VM2
    p = pq; p.vm = v2m
    A(f"s_lshl_b32 s96, s{S_MB}, 3", "s_lshr_b32 s97, s8, 8", "s_add_u32 s96, s96, s97", "s_lshl_b32 s97, s96, 18", f"s_lshl_b32 s10, s{S_W}, 12", "s_add_u32 s97, s97, s10", f"s_add_u32 s97, s97, {WS_PART}")
    srd_off(A, R_PS, 12, "s97", 1 << 18)
    A("s_lshl_b32 s96, s96, 2", f"s_add_u32 s96, s96, s{S_W}", "s_lshl_b32 s96, s96, 7", f"s_add_u32 s68, s96, {F_P}")
    for j in range(1, 4):
        A(f"s_xor_b32 s10, s{S_KS}, {j}", "s_lshl_b32 s10, s10, 16", f"s_lshl_b32 s11, s{S_KS}, 14", "s_add_u32 s10, s10, s11")
        for tp in range(4):
            d = acc2(2*tp, j)
            pack2(A, d, d, acc2(2*tp+1, j))
            v2m.issue(f"buffer_store_dwordx4 v[{d}:{d+3}], v2, s[{R_PS}:{R_PS+3}], s10 offen offset:{tp*1024} sc1", "PS")
    A("s_lshl_b32 s96, s9, 17", f"s_lshl_b32 s97, s{S_KS}, 15", "s_add_u32 s96, s96, s97", "s_add_u32 s96, s96, s8", f"s_sub_u32 s97, {4*MB}, s96")
    srd_off(A, R_XR, 4, "s96", "s97")
    srd_off(A, R_OUT, 98, "s96", "s97")
    A(f"v_and_b32 v{V_OUT}, 15, v1", f"v_lshlrev_b32 v{V_OUT}, 11, v{V_OUT}", "v_lshrrev_b32 v22, 4, v1", f"v_lshl_add_u32 v{V_OUT}, v22, 3, v{V_OUT}")
    A(*rd2(NS1, 2, 8))
    for n in range(NS1, NT):
        ops = p.more_acts(NS1, 1) + p.more_w(n, NT, 2)
        m = n - NS1
        if n == NS1 + 1:
            ops += [([], f"buffer_load_dwordx2 v[{XR+2*t}:{XR+2*t+1}], v{V_OUT}, s[{R_XR}:{R_XR+3}], 0 offen offset:{32*t}", "XR") for t in range(8)]
        if n == C["flag_stage"]:
            A(v2m.wait("PS"), f"s_lshl_b32 s11, s{S_KS}, 2", "s_add_u32 s11, s11, s68"); flag("s11"); v2m.ops.append("FL")
            stamp(A, 14)
        if n == C["poll_stage"]:
            stamp(A, 15)
            pollf(3, "s68")
            stamp(A, 16)
            for j in range(1, 4):
                A(f"s_xor_b32 s10, s{S_KS}, {j}", "s_lshl_b32 s10, s10, 14", f"s_lshl_b32 s11, s{S_KS}, 16", "s_add_u32 s10, s10, s11")
                for tp in range(4):
                    d = PL + (j-1)*16 + tp*4
                    v2m.issue(f"buffer_load_dwordx4 v[{d}:{d+3}], v2, s[{R_PS}:{R_PS+3}], s10 offen offset:{tp*1024} sc1", "PL")
        per = (len(ops) + 6)//7
        for t in range(8):
            last = (n == NT-1)
            nxt = (n, t+3) if t+3 < 8 else (n+1, t+3-8)
            rem = 8 if not last else min(8, 4*(7-t))
            if t == 0 and m % 4 == 0: A(v2m.wait(("A", NS1 + m//4)) + f" lgkmcnt({rem})")
            elif t == 1 and not last: A(v2m.wait(("W", n+1)) + f" lgkmcnt({rem})", "s_barrier")
            else: A(f"s_waitcnt lgkmcnt({rem})")
            r = rd2(*nxt, 8) if nxt[0] < NT else [""]*4
            b = sacc(t)
            for kk in range(2):
                c = "0" if (m == 0 and kk == 0) else f"v[{b}:{b+3}]"
                A(f"v_mfma_f32_16x16x32_bf16 v[{b}:{b+3}], {ar(t, kk, None, 8)}, {q4('a', p.ring[NS1 + m//4] + ((m % 4)*2+kk)*4)}, {c}")
                A(r[2*kk], r[2*kk+1])
            if t >= 1:
                p.emit(ops[:per]); ops = ops[per:]
        assert not ops
    stamp(A, 17)
    A("s_waitcnt vmcnt(0)", "s_mov_b32 s97, 0xffff0000")
    for tp in range(4):
        for hf in range(2):
            t = 2*tp + hf; d = acc2(t, 0); tm = acc2(t, 1)
            for j in range(3):
                pp = PL + j*16 + tp*4 + hf*2
                A(f"v_lshlrev_b32 v{tm}, 16, v{pp}", f"v_and_b32 v{tm+1}, s97, v{pp}", f"v_lshlrev_b32 v{tm+2}, 16, v{pp+1}", f"v_and_b32 v{tm+3}, s97, v{pp+1}")
                A(f"v_pk_add_f32 v[{d}:{d+1}], v[{d}:{d+1}], v[{tm}:{tm+1}]", f"v_pk_add_f32 v[{d+2}:{d+3}], v[{d+2}:{d+3}], v[{tm+2}:{tm+3}]")
            e = acc2(t, 2); x = acc2(t, 3); sa = sacc(t)
            A(f"v_pk_mul_f32 v[{e}:{e+1}], v[{d}:{d+1}], s[{S_NL}:{S_NL+1}] op_sel_hi:[1,0]", f"v_pk_mul_f32 v[{e+2}:{e+3}], v[{d+2}:{d+3}], s[{S_NL}:{S_NL+1}] op_sel_hi:[1,0]")
            for r in range(4): A(f"v_exp_f32 v{e+r}, v{e+r}")
            A(f"v_pk_mul_f32 v[{d}:{d+1}], v[{d}:{d+1}], v[{sa}:{sa+1}]", f"v_pk_mul_f32 v[{d+2}:{d+3}], v[{d+2}:{d+3}], v[{sa+2}:{sa+3}]")
            A(f"v_pk_add_f32 v[{e}:{e+1}], v[{e}:{e+1}], 1.0 op_sel_hi:[1,0]", f"v_pk_add_f32 v[{e+2}:{e+3}], v[{e+2}:{e+3}], 1.0 op_sel_hi:[1,0]")
            for r in range(4): A(f"v_rcp_f32 v{e+r}, v{e+r}")
            pp = XR + 2*t
            A(f"v_lshlrev_b32 v{x}, 16, v{pp}", f"v_and_b32 v{x+1}, s97, v{pp}", f"v_lshlrev_b32 v{x+2}, 16, v{pp+1}", f"v_and_b32 v{x+3}, s97, v{pp+1}")
            A(f"v_pk_fma_f32 v[{d}:{d+1}], v[{d}:{d+1}], v[{e}:{e+1}], v[{x}:{x+1}]", f"v_pk_fma_f32 v[{d+2}:{d+3}], v[{d+2}:{d+3}], v[{e+2}:{e+3}], v[{x+2}:{x+3}]")
            A(f"v_cvt_pk_bf16_f32 v{d}, v{d}, v{d+1}", f"v_cvt_pk_bf16_f32 v{d+1}, v{d+2}, v{d+3}")
            A(f"buffer_store_dwordx2 v[{d}:{d+1}], v{V_OUT}, s[{R_OUT}:{R_OUT+3}], 0 offen offset:{32*t}" + ("", " sc1", " nt", " sc0 sc1")[C["osc"]])
    A(f"s_or_b32 s10, s2, s{S_W}", "s_cmp_lg_u32 s10, 0", "s_cbranch_scc1 L_nogen", f"s_mov_b32 s10, {F_GEN}")
    flag("s10")
    A("L_nogen:")
    if PROF2:
        A("s_waitcnt vmcnt(0)"); stamp(A, 18)
        A(f"s_load_dwordx2 s[20:21], s[0:1], {KA_DBG}", "s_mov_b32 s22, 64", "s_mov_b32 s23, 0x20000", "s_waitcnt lgkmcnt(0)")
        A("v_lshlrev_b32 v2, 2, v1", "buffer_atomic_umax v31, v2, s[20:23], 0 offen sc1")
    elif PROF:
        A("s_waitcnt vmcnt(0)"); stamp(A, 18)
        A("s_lshl_b32 s10, s2, 2", f"s_add_u32 s10, s10, s{S_W}", "s_lshl_b32 s10, s10, 8", f"s_add_u32 s10, s10, {WS_PROF}")
        srd_off(A, 20, 12, "s10", 256)
        A("v_lshlrev_b32 v2, 2, v1", "buffer_store_dword v31, v2, s[20:23], 0 offen")
    A("L_end:", "s_endpgm")
    body = A.finish()
    ref = open(f"cdna_kernels/{NAME}.s.ref").read()
    head = [l for l in ref.splitlines() if l.startswith(";") and "@launch" not in l and "Override" not in l and "grid=ceil" not in l][:12]
    txt = "\n".join(head) + "\n; @launch grid=(256,1,1) block=(256,1,1) lds=163840\n" + '.amdgcn_target "amdgcn-amd-amdhsa--gfx950"\n' + body + descriptor(name, 512, 256)
    return txt

if __name__ == "__main__":
    out = sys.argv[1] if len(sys.argv) > 1 else f"cdna_kernels/{NAME}.s"
    cfg = {}
    for a_ in sys.argv[2:]:
        k, v_ = a_.split("="); cfg[k] = int(v_)
    t = gen(cfg)
    open(out, "w").write(t); print("wrote", out, len(t))
```

```python
import sys, os
sys.path.insert(0, os.path.dirname(os.path.abspath(__file__)))
from common import *

ST = 40960; WREG = 10240
PG = 7168; PQ = 6144; SZG = 1024*PG; SZQ = 1024*PQ
F_X, F_H, F_O, F_KV, F_P, F_GEN, F_SIZE = 0, 4096, 8192, 12288, 20480, 65536, 65536+128

AG_TILES = (2, 3, 4, 5, 6, 7)
V_TILES = [t for t in range(20) if t not in AG_TILES]
def accr(t, j):
    if t in AG_TILES: return ('a', (AG_TILES.index(t)*4 + j)*4)
    return ('v', 32 + (V_TILES.index(t)*4 + j)*4)
def acc(t, j):
    k, b = accr(t, j); return f"{k}[{b}:{b+3}]"
def vq(t, j):
    k, b = accr(t, j); assert k == 'v'; return b
def aq(t, j):
    k, b = accr(t, j); assert k == 'a'; return b
def xr(slot, j, kk): b = 96 + slot*32 + (j*2+kk)*4; return f"a[{b}:{b+3}]"
def ar(t, kk, h=None, n=4):
    b = 192 + (t % n)*8 + kk*4
    return f"a[{b}:{b+3}]" if h is None else f"a[{b+2*h}:{b+2*h+1}]"
def wphi(head, par): b = 224 + (head*2+par)*4; return f"a[{b}:{b+3}]"
def q4(k, b): return f"{k}[{b}:{b+3}]"

S_W, S_MB, S_P, S_TYPE, S_KS, S_TAG, S_WR = 3, 14, 15, 16, 17, 18, 19
R_X, R_W, R_ACT, R_KVP, R_FLAG, R_WD, R_WDQ = 20, 24, 44, 48, 52, 56, 60
R_ZP, R_PS, R_XR, R_OUT, R_WO = 20, 24, 28, 32, 36
S_O01, S_O23, S_O4, S_I23, S_I4, S_OX, S_LW, S_CNT, S_RD, S_DL, S_PST, S_NST = range(64, 76)
S_NL = 76; S_ACTB = 78; S_TQ = 80; S_TW0 = 94; S_TW1 = 95
S_GL = 64
V_L, V_L16, V_J, V_W, V_RD, V_W2, V_TAG = 1, 2, 3, 7, 13, 17, 21
V_RD2 = 7
V_OUT = 15
def acc2(t, j): return 32 + (t*4 + j)*4
FR = 160
def sacc(t): return 160 + 4*t
PL = 192; XR = 240
RING = (96, 128, 160, 0, 32)
NS1, NS2 = 14, 16; NT = NS1 + NS2

PROF2 = os.environ.get("PROF", "0") == "2"
if PROF2: PROF = True
P2MAP = {k: i for i, k in enumerate((0, 1, 3, 4, 5, 6, 7, 8, 9, 10, 13, 14, 15, 16, 17, 18))}
def stamp(A, k):
    if PROF2:
        if k not in P2MAP: return
        if k == 0: A("v_mov_b32 v31, 0")
        A("s_memrealtime s[100:101]", "s_waitcnt lgkmcnt(0)")
        if k == 0: A("s_not_b32 s100, s100")
        A(f"v_writelane_b32 v31, s100, {P2MAP[k]}")
    elif PROF: A("s_memrealtime s[100:101]", "s_waitcnt lgkmcnt(0)", f"v_writelane_b32 v31, s100, {k}")

def glu(A, blocks, store):
    for g0, g1, u0, u1, dst, key in blocks:
        for r in (g0, g0+2, g1, g1+2): A(f"v_pk_mul_f32 v[{r}:{r+1}], v[{r}:{r+1}], s[{S_NL}:{S_NL+1}] op_sel_hi:[1,0]")
        for q in (g0, g1):
            for r in range(4): A(f"v_exp_f32 v{q+r}, v{q+r}")
        for r in (g0, g0+2, g1, g1+2): A(f"v_pk_add_f32 v[{r}:{r+1}], v[{r}:{r+1}], 1.0 op_sel_hi:[1,0]")
        for q in (g0, g1):
            for r in range(4): A(f"v_rcp_f32 v{q+r}, v{q+r}")
        for r, u in ((g0, u0), (g0+2, u0+2), (g1, u1), (g1+2, u1+2)): A(f"v_pk_mul_f32 v[{r}:{r+1}], v[{r}:{r+1}], v[{u}:{u+1}]")
        pack2(A, dst, g0, g1)
        store(key, dst)

def gen(cfg=None):
    C = dict(q_pollq=1, q_kv=2, q_sum1=3, q_o=4, q_pollkv=4, ovl=10, flag_stage=18, poll_stage=24, WD=7, cpf=1, osc=1, fine=0, fine2=0, wfirst=0, pfw=0, pfrow=192, pfnt=0, wnt=0, xnt=0)
    if cfg: C.update(cfg)
    A = Asm(); name = NAME + "_kernel"
    header(A, name)
    A("s_cmp_ge_u32 s2, 256", "s_cbranch_scc1 L_end")
    if C["cpf"]:
        A("s_getpc_b64 s[20:21]", "L_pc:", "s_mov_b32 s22, L_end-L_pc", "s_mov_b32 s23, 0x20000", "s_bfe_u32 s8, s2, 0x30003", "s_lshl_b32 s8, s8, 14",
          "v_lshlrev_b32 v3, 6, v0", "buffer_load_dword v4, v3, s[20:23], s8 offen")
    stamp(A, 0)
    A(f"s_load_dwordx2 s[4:5], s[0:1], {KA_X}", f"s_load_dwordx2 s[12:13], s[0:1], {KA_WS}", f"s_load_dwordx4 s[96:99], s[0:1], {KA_WQKV}",
      f"s_load_dwordx8 s[80:87], s[0:1], {KA_WG}", f"s_load_dwordx2 s[6:7], s[0:1], {KA_WO}")
    A("v_lshrrev_b32 v2, 6, v0", "v_and_b32 v1, 63, v0", f"v_readfirstlane_b32 s{S_W}, v2")
    A(f"s_bfe_u32 s{S_KS}, s2, 0x20001", "s_bfe_u32 s8, s2, 0x30003", f"s_lshl_b32 s9, s{S_KS}, 3", "s_add_u32 s9, s9, s8",
      f"s_and_b32 s{S_MB}, s2, 1", f"s_lshl_b32 s{S_MB}, s{S_MB}, 2", "s_lshr_b32 s79, s2, 6", f"s_add_u32 s{S_MB}, s{S_MB}, s79",
      f"s_lshr_b32 s{S_P}, s9, 1", f"s_and_b32 s{S_TYPE}, s9, 1")
    B = 64
    def L(r): return B + r
    A(f"v_and_b32 v{L(1)}, 7, v0", f"v_bfe_u32 v{L(2)}, v0, 3, 3")
    A(f"v_lshlrev_b32 v{L(4)}, 11, v{L(1)}", f"v_lshl_add_u32 v{L(4)}, v2, 9, v{L(4)}", f"v_lshl_add_u32 v{L(4)}, v{L(2)}, 4, v{L(4)}")
    A(f"s_lshl_b32 s79, s{S_MB}, 5", "s_add_u32 s79, s79, s9")
    A("s_lshl_b32 s88, s79, 14")
    A("s_waitcnt lgkmcnt(0)")
    srd(A, R_ACT, "s4", "s5", 4*MB)
    for i in range(4): A(f"buffer_load_dwordx4 v[{L(8+4*i)}:{L(11+4*i)}], v{L(4)}, s[{R_ACT}:{R_ACT+3}], s88 offen offset:{i*128}" + (" nt" if C["xnt"] else ""))
    srd_off(A, R_FLAG, 12, WS_FLAG, F_SIZE)
    A(f"s_load_dword s{S_TAG}, s[{R_FLAG}:{R_FLAG+1}], {F_GEN}")
    A(f"v_lshlrev_b32 v{L(5)}, 15, v2", f"v_lshl_add_u32 v{L(5)}, v{L(1)}, 4, v{L(5)}", f"v_lshrrev_b32 v{L(6)}, 2, v{L(2)}", f"v_lshl_add_u32 v{L(5)}, v{L(6)}, 10, v{L(5)}",
      f"v_and_b32 v{L(6)}, 3, v{L(2)}", f"v_lshl_add_u32 v{L(5)}, v{L(6)}, 8, v{L(5)}")
    A(f"v_lshlrev_b32 v{L(7)}, 3, v{L(1)}", f"v_add_u32 v{L(7)}, {3*ST+4096}, v{L(7)}", f"v_lshl_add_u32 v{L(6)}, v2, 6, v{L(7)}")
    A("v_bfe_u32 v22, v1, 4, 1", "v_and_b32 v23, 3, v1",
      "v_lshlrev_b32 v24, 1, v22", "v_xor_b32 v24, v24, v23", "v_lshlrev_b32 v24, 4, v24",
      "v_bfe_u32 v25, v1, 2, 2", "v_lshl_add_u32 v26, v22, 3, v25", "v_lshrrev_b32 v27, 4, v1", "v_lshl_add_u32 v28, v27, 3, v25",
      "v_lshrrev_b32 v29, 5, v1", "v_lshl_add_u32 v29, v29, 6, v24")
    A(f"s_lshr_b32 s89, s{S_W}, 1", "s_lshl_b32 s89, s89, 2", f"s_and_b32 s90, s{S_W}, 1", "s_lshl_b32 s88, s90, 4", "s_add_u32 s88, s88, s89")
    A("v_add_u32 v26, s88, v26", "v_add_u32 v28, s89, v28")
    A(f"s_cmp_eq_u32 s{S_TYPE}, 0", f"s_mov_b32 s91, {PG}", f"s_cselect_b32 s88, s91, {PQ}", f"s_cselect_b32 s89, {PQ}, s91")
    A(f"v_mul_lo_u32 v{V_W}, v26, s91", f"v_mul_lo_u32 v{V_W+2}, v26, s88", f"v_mul_lo_u32 v{V_W+4}, v28, s89")
    A(f"v_add_u32 v{V_W}, v{V_W}, v29", f"v_add_u32 v{V_W+2}, v{V_W+2}, v29", f"v_add_u32 v{V_W+4}, v{V_W+4}, v24")
    A(f"s_lshl_b32 s{S_I23}, s88, 6", f"s_lshl_b32 s{S_I4}, s89, 6")
    A("s_lshl_b32 s88, s88, 5", "s_sub_u32 s88, s88, 1024", "s_lshl_b32 s89, s89, 5", "s_sub_u32 s89, s89, 1024")
    A(f"v_add_u32 v{V_W+1}, {32*PG-1024}, v{V_W}", f"v_add_u32 v{V_W+3}, s88, v{V_W+2}", f"v_add_u32 v{V_W+5}, s89, v{V_W+4}")
    A("v_lshlrev_b32 v2, 4, v1")
    A(f"s_mul_i32 s91, s{S_P}, 448")
    A(f"s_bitcmp0_b32 s{S_P}, 0", "s_cselect_b32 s88, 0, 192", "s_cselect_b32 s89, 256, 64", "s_cselect_b32 s92, 384, 0")
    A(f"s_cmp_eq_u32 s{S_TYPE}, 0", "s_cselect_b32 s88, s88, s89", "s_add_u32 s88, s88, s91", "s_add_u32 s92, s92, s91")
    A(f"s_lshl_b32 s91, s{S_P}, 7")
    if C["pfw"]:
        R0 = C["pfrow"]; ng = -(-(1024-R0)*PG//128//1024); nq = -(-(1024-R0)*PQ//128//1024)
        A("s_lshl_b32 s10, s2, 2", f"s_add_u32 s10, s10, s{S_W}", f"s_mul_i32 s11, s10, {ng*128}", f"s_add_u32 s11, s11, {R0*PG}", "s_sub_u32 s11, s11, s88",
          "v_lshlrev_b32 v41, 7, v1", "v_add_u32 v40, s11, v41", f"s_mul_i32 s11, s10, {nq*128}", f"s_add_u32 s11, s11, {R0*PQ}", "v_add_u32 v41, s11, v41")
    def wsrd(d, lo, hi, off, size, comp):
        A(f"s_sub_u32 s10, {off}, {comp}" if comp else f"s_mov_b32 s10, {off}")
        A(f"s_ashr_i32 s11, s10, 31", f"s_add_u32 s{d}, {lo}, s10", f"s_addc_u32 s{d+1}, {hi}, s11", f"s_sub_u32 s{d+2}, {size}, s10", f"s_mov_b32 s{d+3}, 0x20000")
    wsrd(R_W, "s80", "s81", "s88", SZG, 0)
    wsrd(R_W+4, "s82", "s83", "s88", SZG, 2048)
    A(f"s_cmp_eq_u32 s{S_TYPE}, 0", "s_cbranch_scc0 L_srd_kv")
    A("s_add_u32 s89, s88, 128")
    wsrd(R_W+8, "s80", "s81", "s89", SZG, 0)
    wsrd(R_W+12, "s82", "s83", "s89", SZG, 2048)
    A("s_lshl_b32 s89, s90, 6", "s_add_u32 s89, s89, s91")
    wsrd(R_W+16, "s96", "s97", "s89", SZQ, 0)
    A(f"s_lshl_b32 s{S_ACTB}, s88, 6", f"s_add_u32 s{S_ACTB}, s{S_ACTB}, 8192")
    A("s_branch L_srd_done")
    A("L_srd_kv:")
    A("s_add_u32 s89, s91, 2048")
    wsrd(R_W+8, "s96", "s97", "s89", SZQ, 0)
    A("s_add_u32 s89, s91, 4096")
    wsrd(R_W+12, "s96", "s97", "s89", SZQ, 2048)
    A("s_cmp_eq_u32 s90, 0", "s_cselect_b32 s94, s80, s82", "s_cselect_b32 s95, s81, s83")
    wsrd(R_W+16, "s94", "s95", "s92", SZG, 0)
    A(f"s_lshr_b32 s{S_ACTB}, s92, 7", f"s_lshl_b32 s{S_ACTB}, s{S_ACTB}, 13", "s_bfe_u32 s89, s92, 0x10006", "s_lshl_b32 s89, s89, 10", f"s_add_u32 s{S_ACTB}, s{S_ACTB}, s89")
    A("L_srd_done:")
    A(f"s_mul_i32 s{S_WR}, s{S_W}, {WREG}", f"s_mov_b32 s{S_LW}, s{S_WR}")
    for r in (S_O01, S_O23, S_O4, S_OX): A(f"s_mov_b32 s{r}, 0")
    def dma_list():
        o = []
        for p in range(10):
            sl, kk = p >> 1, p & 1
            grp = (0, 0, 1, 1, 2)[sl]
            pre = [f"s_add_u32 m0, s{S_LW}, {(p >> 2)*4096}"] if p % 4 == 0 else []
            if p == 0: pre = [f"s_mov_b32 m0, s{S_LW}"]
            o.append((pre, f"buffer_load_dwordx4 v{V_W+grp*2+kk}, s[{R_W+4*sl}:{R_W+4*sl+3}], s{S_O01+grp} offen offset:{(p & 3)*1024}" + (" nt" if C["wnt"] else "") + " lds"))
        return o
    def dma_post():
        return [f"s_add_u32 s{S_O01}, s{S_O01}, {64*PG}", f"s_add_u32 s{S_O23}, s{S_O23}, s{S_I23}", f"s_add_u32 s{S_O4}, s{S_O4}, s{S_I4}",
                f"s_add_u32 s{S_LW}, s{S_LW}, {ST}", f"s_sub_u32 s10, s{S_LW}, {4*ST}", f"s_cmp_ge_u32 s{S_LW}, {4*ST}", f"s_cselect_b32 s{S_LW}, s10, s{S_LW}"]
    def emit_dma():
        for pre, ins in dma_list(): A(*pre); A(ins)
        A(*dma_post())
    emit_dma()
    A(f"s_lshl_b32 s89, s{S_P}, 12")
    srd_off(A, R_WDQ, 98, "s89", 4096)
    A(f"s_lshl_b32 s89, s{S_W}, 10", f"s_add_u32 m0, s89, {3*ST}")
    A(f"buffer_load_dwordx4 v2, s[{R_WDQ}:{R_WDQ+3}], s89 offen lds")
    srd(A, R_WDQ, "s96", "s97", SZQ)
    emit_dma()
    srd_off(A, R_KVP, 12, WS_XN, 4*MB)
    A("s_lshr_b32 s88, s79, 3", "s_lshl_b32 s88, s88, 17", "s_bfe_u32 s89, s79, 0x20001", "s_lshl_b32 s89, s89, 11", "s_add_u32 s88, s88, s89",
      "s_and_b32 s89, s79, 1", "s_lshl_b32 s89, s89, 7", "s_add_u32 s88, s88, s89")
    A("s_mov_b32 s89, 0xffff0000")
    for i in range(4):
        A(f"s_waitcnt vmcnt({21+3-i})")
        for q in range(4):
            r = L(8 + 4*i + q); d = L(32 + 8*i + 2*q)
            A(f"v_lshlrev_b32 v{d}, 16, v{r}", f"v_and_b32 v{d+1}, s89, v{r}")
    stamp(A, 1)
    def p2(r): return f"v[{L(r)}:{L(r)+1}]"
    def red8(r, t):
        r = L(r); t = L(t)
        A(f"v_add_f32_dpp v{r}, v{r}, v{r} row_ror:8 row_mask:0xf bank_mask:0xf")
        A(f"v_mov_b32 v{t}, v{r}", f"v_permlane16_swap_b32 v{r}, v{t}", f"v_add_f32 v{r}, v{r}, v{t}")
        A(f"v_mov_b32 v{t}, v{r}", f"v_permlane32_swap_b32 v{r}, v{t}", f"v_add_f32 v{r}, v{r}, v{t}")
    A(f"v_pk_add_f32 {p2(24)}, {p2(32)}, {p2(34)}", f"v_pk_add_f32 {p2(26)}, {p2(36)}, {p2(38)}")
    for q in range(2, 8):
        A(f"v_pk_add_f32 {p2(24)}, {p2(24)}, {p2(32+4*q)}", f"v_pk_add_f32 {p2(26)}, {p2(26)}, {p2(34+4*q)}")
    A(f"v_pk_add_f32 {p2(24)}, {p2(24)}, {p2(26)}", f"v_add_f32 v{L(24)}, v{L(24)}, v{L(25)}")
    red8(24, 25)
    A(f"v_mul_f32 v{L(26)}, 0x3b800000, v{L(24)}")
    for q in range(16):
        t = 8 + 2*(q % 8); ac = 28 + 2*(q % 2)
        A(f"v_pk_add_f32 {p2(t)}, {p2(32+2*q)}, {p2(26)} op_sel_hi:[1,0] neg_lo:[0,1] neg_hi:[0,1]")
        if q < 2: A(f"v_pk_mul_f32 {p2(ac)}, {p2(t)}, {p2(t)}")
        else: A(f"v_pk_fma_f32 {p2(ac)}, {p2(t)}, {p2(t)}, {p2(ac)}")
    A(f"v_pk_add_f32 {p2(28)}, {p2(28)}, {p2(30)}", f"v_add_f32 v{L(27)}, v{L(28)}, v{L(29)}")
    red8(27, 25)
    A(f"ds_write_b64 v{L(6)}, {p2(26)}", "s_waitcnt lgkmcnt(0)", "s_barrier")
    for w in range(4): A(f"ds_read_b64 {p2(8+2*w)}, v{L(7)} offset:{64*w}")
    A(f"s_mul_i32 s{S_TAG}, s{S_TAG}, 0x9e3779b1", f"s_add_u32 s{S_TAG}, s{S_TAG}, 0x7f4a7c15", f"v_mov_b32 v{V_TAG}, s{S_TAG}")
    A("s_waitcnt lgkmcnt(0)")
    def V(s):
        import re
        return re.sub(r"\bv(\d+)\b", lambda m: f"v{L(int(m.group(1)))}", s)
    for s_ in ("v_add_f32 v16, v8, v10", "v_add_f32 v17, v12, v14", "v_add_f32 v16, v16, v17", "v_mul_f32 v16, 0x3e800000, v16",
               "v_add_f32 v17, v9, v11", "v_add_f32 v18, v13, v15", "v_add_f32 v17, v17, v18",
               "v_sub_f32 v8, v8, v16", "v_sub_f32 v10, v10, v16", "v_sub_f32 v12, v12, v16", "v_sub_f32 v14, v14, v16",
               "v_mul_f32 v18, v8, v8", "v_fmac_f32 v18, v10, v10", "v_fmac_f32 v18, v12, v12", "v_fmac_f32 v18, v14, v14",
               "v_mul_f32 v17, 0x3a800000, v17", "v_fmac_f32 v17, 0x3e800000, v18"): A(V(s_))
    def rbf(r): A(f"v_cvt_pk_bf16_f32 v{L(r)}, v{L(r)}, v{L(r)}", f"v_lshlrev_b32 v{L(r)}, 16, v{L(r)}")
    rbf(16); rbf(17)
    A(V("v_add_f32 v17, 0x3727c5ac, v17")); rbf(17)
    A(V("v_sqrt_f32 v17, v17")); rbf(17)
    A(V("v_rcp_f32 v17, v17"))
    for i in range(4):
        qs = range(4*i, 4*i+4)
        for q in qs: A(f"v_pk_add_f32 {p2(32+2*q)}, {p2(32+2*q)}, {p2(16)} op_sel_hi:[1,0] neg_lo:[0,1] neg_hi:[0,1]")
        for q in qs: A(f"v_cvt_pk_bf16_f32 v{L(32+2*q)}, v{L(32+2*q)}, v{L(33+2*q)}")
        for q in qs: A(f"v_and_b32 v{L(33+2*q)}, s89, v{L(32+2*q)}", f"v_lshlrev_b32 v{L(32+2*q)}, 16, v{L(32+2*q)}")
        for q in qs: A(f"v_pk_mul_f32 {p2(32+2*q)}, {p2(32+2*q)}, {p2(16)} op_sel:[0,1] op_sel_hi:[1,1]")
        for q in range(4): A(f"v_cvt_pk_bf16_f32 v{L(64+4*i+q)}, v{L(32+8*i+2*q)}, v{L(33+8*i+2*q)}")
        A(f"buffer_store_dwordx4 v[{L(64+4*i)}:{L(67+4*i)}], v{L(5)}, s[{R_KVP}:{R_KVP+3}], s88 offen sc1")
        if i < 3: A("s_add_u32 s88, s88, 8192")
    stamp(A, 2)
    A("s_lshl_b32 s79, s79, 2", f"s_add_u32 s79, s79, s{S_W}", "s_lshl_b32 s79, s79, 2")
    A(f"s_lshl_b32 s88, s{S_KS}, 11", f"v_add_u32 v{V_J}, s88, v2", f"v_xor_b32 v{V_J+1}, 2048, v{V_J}", f"v_xor_b32 v{V_J+2}, 4096, v{V_J}", f"v_xor_b32 v{V_J+3}, 0x1800, v{V_J}")
    A("v_lshlrev_b32 v26, 3, v23", "v_lshl_add_u32 v26, v25, 6, v26", "v_lshl_add_u32 v28, v22, 5, v26",
      "v_lshrrev_b32 v30, 5, v1", f"v_mul_u32_u24 v30, {WREG}, v30", "v_lshl_add_u32 v30, v22, 8, v30",
      f"v_add_u32 v{V_RD}, v30, v28", f"v_xor_b32 v{V_RD+1}, 32, v{V_RD}",
      f"v_lshl_add_u32 v{V_RD+2}, v27, 8, v28", f"v_xor_b32 v{V_RD+3}, 32, v{V_RD+2}")
    A("v_lshl_add_u32 v30, v27, 8, v26", f"v_add_u32 v30, {3*ST}, v30")
    A("v_bfe_u32 v26, v1, 2, 3", "v_lshl_add_u32 v26, v26, 11, v29", f"s_lshl_b32 s88, s{S_W}, 14", "v_add_u32 v26, s88, v26")
    for p in range(4): A(f"v_add_u32 v{V_W2+p}, {(p >> 1)*128 + (p & 1)*65536 - p*1024 + 2048}, v26")
    A("s_lshl_b32 s8, s8, 8")
    wsrd(R_WD, "s84", "s85", "s8", 3584*2048, 2048)
    A("s_mov_b32 s10, s86", "s_mov_b32 s11, s87") if False else None
    A("s_mov_b32 s98, s86", "s_mov_b32 s99, s87")
    A(f"s_lshl_b32 s9, s{S_MB}, 2", f"s_add_u32 s9, s9, s{S_W}")
    A("s_lshl_b32 s88, s9, 17")
    srd_off(A, R_X, 12, "s88", 131072)
    A(f"s_mul_i32 s88, s9, {ACT_GRP}", f"s_add_u32 s88, s88, {WS_ACT}")
    srd_off(A, R_ACT, 12, "s88", ACT_GRP)
    A(f"s_and_b32 s96, s{S_P}, 3", f"s_mul_i32 s97, s{S_KS}, {14*8192}")
    for i in range(4):
        A(f"s_xor_b32 s10, s96, {i}", "s_lshr_b32 s11, s10, 1", f"s_mul_i32 s11, s11, {7*8192}", "s_add_u32 s11, s11, s97", "s_and_b32 s10, s10, 1")
        if i in (0, 2): A(f"s_add_u32 s{S_TQ+12+i//2}, s11, {3*8192}")
        A(f"s_mul_i32 s{S_TQ+2*i}, s10, {5*8192}", f"s_add_u32 s{S_TQ+2*i}, s{S_TQ+2*i}, s11", f"s_add_u32 s{S_TQ+2*i+1}, s{S_TQ+2*i}, 8192",
          f"s_lshl_b32 s10, s10, 14", "s_add_u32 s10, s10, s11", f"s_add_u32 s{S_TQ+8+i}, s10, {2*8192}")
    A(f"s_cmp_eq_u32 s{S_TYPE}, 0", f"s_cselect_b32 s{S_TW0}, s{S_TQ}, s{S_TQ+8}", f"s_cselect_b32 s{S_TW1}, s{S_TQ+1}, s{S_TQ}")
    A(f"s_mov_b32 s{S_NL}, {NLOG2E:#x}", f"s_mov_b32 s{S_NL+1}, {LOG2E:#x}")
    A(f"s_mov_b32 s{S_RD}, 0", f"s_mov_b32 s{S_CNT}, 4", f"s_mov_b32 s{S_PST}, {ST}", f"s_mov_b32 s{S_NST}, {(-3*ST) & 0xffffffff:#x}")
    def flag(soff):
        A("s_mov_b64 exec, 1", f"buffer_store_dword v{V_TAG}, off, s[{R_FLAG}:{R_FLAG+3}], {soff} sc1", "s_mov_b64 exec, -1")
    npoll = [0]
    def pollf(mask, soff, off=0, vt=22):
        lab = f"L_poll{npoll[0]}"; npoll[0] += 1
        A(f"v_and_b32 v{vt}, {mask}, v1", f"v_lshlrev_b32 v{vt}, 2, v{vt}", "s_mov_b32 s10, 0x40000", f"{lab}:")
        A(f"buffer_load_dword v{vt+1}, v{vt}, s[{R_FLAG}:{R_FLAG+3}], {soff} offen offset:{off} sc1", "s_sub_u32 s10, s10, 1", f"s_cbranch_scc1 {lab}_out",
          "s_waitcnt vmcnt(0)", f"v_cmp_ne_u32 vcc, s{S_TAG}, v{vt+1}", f"s_cbranch_vccnz {lab}", f"{lab}_out:")
    A("s_waitcnt vmcnt(0)")
    flag("s79")
    stamp(A, 3)
    A(f"s_lshl_b32 s96, s{S_P}, 2", f"s_add_u32 s96, s96, s{S_W}", "s_lshl_b32 s97, s96, 15", f"s_add_u32 s97, s97, {WS_KVP}")
    srd_off(A, R_KVP, 12, "s97", 32768)
    A("s_lshl_b32 s79, s9, 7")
    pollf(31, "s79")
    stamp(A, 4)
    def x_list(slot):
        return [f"buffer_load_dwordx4 {xr(slot, f >> 1, f & 1)}, v{V_J + (f >> 1)}, s[{R_X}:{R_X+3}], s{S_OX} offen offset:{(f & 1)*1024} sc1" for f in range(8)]
    x_post = [f"s_add_u32 s{S_OX}, s{S_OX}, 8192"]
    A(*x_list(0)); A(*x_post); A(*x_list(1)); A(*x_post); emit_dma()
    NPF = 0
    pfl = []
    if C["pfw"]:
        fl = ("", " nt", " sc1")[C["pfnt"]]
        pfl.append(f"s_mov_b32 exec_hi, {(1 << (ng-32)) - 1}")
        for o in range(C["pfw"]):
            pfl += [f"buffer_load_dword v0, v28, s[{R_W}:{R_W+3}], 0 offen offset:{64*o}{fl}", f"buffer_load_dword v0, v28, s[{R_W+4}:{R_W+7}], 0 offen offset:{2048+64*o}{fl}"]
        pfl.append(f"s_mov_b32 exec_hi, {(1 << (nq-32)) - 1}")
        for o in range(C["pfw"]): pfl.append(f"buffer_load_dword v0, v29, s[{R_WDQ}:{R_WDQ+3}], 0 offen offset:{64*o}{fl}")
        pfl.append("s_mov_b32 exec_hi, -1")
        A("v_mov_b32 v28, v40", "v_mov_b32 v29, v41")
    pfl += [f"s_mov_b32 s{R_WDQ}, s{R_WD}", f"s_mov_b32 s{R_WDQ+1}, s{R_WD+1}", f"s_cmp_eq_u32 s{S_TYPE}, 0", f"s_cselect_b32 s{R_WDQ+2}, s{R_WD+2}, 0", f"s_mov_b32 s{R_WDQ+3}, 0x20000"]
    A("s_barrier")
    def rd(t):
        tt = t % 20
        sl, u, par = tt >> 2, (tt >> 1) & 1, tt & 1
        o = []
        for kk in range(2):
            for h in range(2):
                if sl < 4: o.append(f"ds_read_b64_tr_b16 {ar(t, kk, h)}, v{V_RD+par} offset:{h*2*WREG + (sl*2+kk)*1024 + u*512}")
                else: o.append(f"ds_read_b64_tr_b16 {ar(t, kk, h)}, v{V_RD+2+par} offset:{h*2*WREG + u*WREG + (8+kk)*1024}")
        return o
    for hd in range(2):
        for par in range(2):
            for h in range(2):
                b = 224 + (hd*2+par)*4 + 2*h
                A(f"ds_read_b64_tr_b16 a[{b}:{b+1}], v30 offset:{hd*2048 + h*1024 + par*32}")
    A(*rd(0)); A(*rd(1))
    if PROF:
        A(f"s_waitcnt vmcnt({18+NPF})"); stamp(A, 5)

    def w2_ops(R, soff_pre, slot, tag):
        o = []
        for p in range(4):
            pre = [f"s_add_u32 m0, s{S_WR}, {(slot >> 1)*ST + (slot & 1)*4096}", soff_pre] if p == 0 else []
            o.append((pre, f"buffer_load_dwordx4 v{V_W2+p}, s[{R}:{R+3}], s11 offen offset:{p*1024} lds", tag))
        return o

    def stage(xs, first=False, tail=None, vm=None):
        fill = {}
        def put(i, ins): fill.setdefault(i, []).extend(ins if isinstance(ins, list) else [ins])
        if tail is None:
            x0, w0 = (11, 1) if C["wfirst"] else (1, 9)
            for n, ins in enumerate(x_list((xs+2) % 3)): put(8*(x0+n)+3, ins)
            put(8*(x0+7)+5, x_post)
            for n, (pre, ins) in enumerate(dma_list()):
                put(8*(w0+n)+1, pre); put(8*(w0+n)+3, ins)
            if first: put(8*3*max(C["pfw"], 1)+5, pfl)
            dp = dma_post()
            put(8*18+5, dp[0]); put(8*18+7, dp[1]); put(8*19+1, dp[2]); put(8*19+3, dp[3:5]); put(8*19+5, dp[5:7])
        else:
            for n, (pre, ins, tag) in enumerate(tail[1]):
                put(8*(1+n)+1, pre); put(8*(1+n)+3, ("vm", ins, tag))
        last = tail is not None and tail[0] == 15
        put(8*13+5, [f"s_add_u32 s{S_RD}, s{S_RD}, 1", f"s_and_b32 s{S_RD}, s{S_RD}, 3"])
        put(8*13+7, [f"s_cselect_b32 s{S_DL}, s{S_PST}, s{S_NST}"])
        put(8*15+5, f"v_add_u32 v{V_RD}, s{S_DL}, v{V_RD}"); put(8*15+7, f"v_add_u32 v{V_RD+1}, s{S_DL}, v{V_RD+1}")
        if not last:
            put(8*18+1, f"v_add_u32 v{V_RD+2}, s{S_DL}, v{V_RD+2}"); put(8*19+7, f"v_add_u32 v{V_RD+3}, s{S_DL}, v{V_RD+3}")
        for t in range(20):
            lg = 4 if not (last and t == 19) else 0
            if tail is None:
                if C["wfirst"] and t < 2:
                    if t == 0: A(f"s_waitcnt vmcnt(18) lgkmcnt(4)")
                    else: A("s_waitcnt lgkmcnt(4)", "s_barrier")
                elif t == 0: A(f"s_waitcnt vmcnt({18+NPF if first else 28}) lgkmcnt(4)")
                elif t == 1: A("s_waitcnt lgkmcnt(4)" if first else "s_waitcnt vmcnt(18) lgkmcnt(4)", "s_barrier")
                else: A("s_waitcnt lgkmcnt(4)")
            else:
                n = tail[0]
                if t == 0: A(vm.wait(("X", n)) + " lgkmcnt(4)")
                elif t == 1: A((vm.wait(("W1", n+1)) + " lgkmcnt(4)") if n < 15 else "s_waitcnt lgkmcnt(4)", "s_barrier")
                else: A(f"s_waitcnt lgkmcnt({lg})")
            if not (last and t >= 18):
                r = rd(t+2)
                for q in range(4): put(8*t+2*q, r[q])
            seen = set()
            for q, (j, kk) in enumerate(snake(t)):
                c = "0" if (first and j not in seen) else acc(t, j)
                seen.add(j)
                A(f"v_mfma_f32_16x16x32_bf16 {acc(t, j)}, {ar(t, kk)}, {xr(xs, j, kk)}, {c}")
                for x in fill.get(8*t+q, []):
                    if isinstance(x, tuple): vm.issue(x[1], x[2])
                    else: A(x)
    stage(0, first=True)
    A("L_loop:")
    def lstamp(k):
        if C["fine2"] and PROF: A("s_memrealtime s[100:101]", "s_waitcnt lgkmcnt(0)", f"s_mul_i32 s101, s{S_CNT}, -3", f"s_add_u32 m0, s101, {32+k}", "s_nop 4", "v_writelane_b32 v31, s100, m0")
    lstamp(0); stage(1); lstamp(1); stage(2); lstamp(2); stage(0)
    A(f"s_sub_u32 s{S_CNT}, s{S_CNT}, 1", f"s_cmp_lg_u32 s{S_CNT}, 0", "s_cbranch_scc1 L_loop")
    vm = VM(A)
    vm.ops = [("X", 13)]*8 + [("W1", 14)]*10 + [("X", 14)]*8 + [("W1", 15)]*10
    if C["wfirst"]: vm.ops = [("W1", 14)]*10 + [("X", 13)]*8 + [("W1", 15)]*10 + [("X", 14)]*8
    A(f"s_and_b32 s10, s{S_MB}, 3", f"s_lshl_b32 s10, s10, 2", f"s_add_u32 s10, s10, s{S_W}", f"s_mul_i32 s96, s10, {56*2048}", f"s_mul_i32 s97, s{S_KS}, {896*2048}",
      "s_add_u32 s96, s96, s97", f"s_add_u32 s97, s96, {24*2048}", "s_lshl_b32 s79, s10, 17")
    A("v_lshrrev_b32 v22, 1, v1", "v_lshlrev_b32 v22, 11, v22", "v_and_b32 v23, 1, v1", "v_lshl_add_u32 v22, v23, 7, v22")
    pf = [([], f"buffer_load_dword v0, v22, s[{R_WD}:{R_WD+3}], s96 offen offset:2048", "PF"), ([], f"buffer_load_dword v0, v22, s[{R_WD}:{R_WD+3}], s97 offen offset:2048", "PF")]
    def tw(sreg): return f"s_lshl_b32 s11, s{sreg}, 4"
    t13 = [([], i, ("X", 15)) for i in x_list(0)] + w2_ops(R_WD, tw(S_TW0), 0, ("W", 0)) + w2_ops(R_WD, tw(S_TW1), 1, ("W", 1)) + pf
    if C["fine2"]: stamp(A, 32)
    stage(1, tail=(13, t13), vm=vm)
    if C["fine2"]: stamp(A, 33)
    stage(2, tail=(14, w2_ops(R_WDQ, tw(S_TQ+2), 2, ("W", 2)) + w2_ops(R_WDQ, tw(S_TQ+3), 3, ("W", 3))), vm=vm)
    stage(0, tail=(15, w2_ops(R_WDQ, tw(S_TQ+4), 4, ("W", 4)) + w2_ops(R_WDQ, tw(S_TQ+5), 5, ("W", 5))), vm=vm)
    stamp(A, 6)
    A(f"s_lshl_b32 s{S_GL}, s9, 7")
    A(f"s_lshl_b32 s96, s{S_P}, 2", f"s_add_u32 s96, s96, s{S_W}", "s_lshl_b32 s97, s96, 10", f"s_add_u32 s97, s97, {WS_ZP}")
    srd_off(A, R_ZP, 12, "s97", 1024)
    A(f"s_lshl_b32 s65, s96, 7", f"s_add_u32 s65, s65, {F_KV}")
    wsrd(R_WO, "s6", "s7", "s8", 1024*2048, 2048)
    A(f"v_mov_b32 v{V_RD2}, v{V_RD}", f"v_mov_b32 v{V_RD2+1}, v{V_RD+1}")
    for b in range(1, 4):
        A(f"v_add_u32 v{V_RD2+2*b}, {b*ST}, v{V_RD2}", f"v_add_u32 v{V_RD2+2*b+1}, {b*ST}, v{V_RD2+1}")
    A(f"s_lshl_b32 s66, s{S_P}, 2", f"s_add_u32 s66, s66, s{S_GL}")
    A(f"s_lshl_b32 s67, s{S_KS}, 4", f"s_add_u32 s67, s67, s{S_GL}", f"s_add_u32 s67, s67, {F_H}")

    def mk_store(vm):
        def hstore(soff):
            def st(key, q):
                j, u = key
                vm.issue(f"buffer_store_dwordx4 v[{q}:{q+3}], v{V_J+j}, s[{R_ACT}:{R_ACT+3}], s{soff} offen offset:{u*1024} sc1", "HS")
            return st
        return hstore
    def aread(dst, src):
        for r in range(4): A(f"v_accvgpr_read_b32 v{dst+r}, a{src+r}")
    def feat(items, normalize):
        for fq, hd, p0, ep, sp in items:
            for par in range(2):
                A(f"v_mfma_f32_16x16x32_bf16 v[{p0+4*par}:{p0+4*par+3}], {wphi(hd, par)}, v[{fq}:{fq+3}], 0")
        for fq, hd, p0, ep, sp in items:
            A(f"v_max3_f32 v{sp}, v{p0}, v{p0+1}, v{p0+2}", f"v_max3_f32 v{sp+1}, -v{p0}, -v{p0+1}, -v{p0+2}",
              f"v_max3_f32 v{sp}, v{sp}, v{p0+3}, v{p0+4}", f"v_max3_f32 v{sp+1}, v{sp+1}, -v{p0+3}, -v{p0+4}",
              f"v_max3_f32 v{sp}, v{sp}, v{p0+5}, v{p0+6}", f"v_max3_f32 v{sp+1}, v{sp+1}, -v{p0+5}, -v{p0+6}",
              f"v_max_f32 v{sp}, v{sp}, v{p0+7}", f"v_max_f32_e64 v{sp+1}, v{sp+1}, -v{p0+7}")
        groups = [(items[i][4], items[i+1][4]) for i in range(0, len(items), 2)]
        xlane_reduce(A, groups, "v_max_f32", lambda r: f"v_mul_f32 v{r}, s{S_NL}, v{r}")
        for fq, hd, p0, ep, sp in items:
            for i in range(0, 8, 2):
                A(f"v_pk_fma_f32 v[{ep+i}:{ep+i+1}], v[{p0+i}:{p0+i+1}], s[{S_NL}:{S_NL+1}], v[{sp}:{sp+1}] op_sel:[0,1,0] op_sel_hi:[1,1,0]")
            for i in range(0, 8, 2):
                A(f"v_pk_fma_f32 v[{p0+i}:{p0+i+1}], v[{p0+i}:{p0+i+1}], s[{S_NL}:{S_NL+1}], v[{sp}:{sp+1}] op_sel:[0,0,1] op_sel_hi:[1,0,1]")
            for i in range(8): A(f"v_exp_f32 v{ep+i}, v{ep+i}")
            for i in range(8): A(f"v_exp_f32 v{p0+i}, v{p0+i}")
        if normalize:
            for fq, hd, p0, ep, sp in items:
                A(f"v_pk_add_f32 v[{fq}:{fq+1}], v[{ep}:{ep+1}], v[{ep+2}:{ep+3}]", f"v_pk_add_f32 v[{fq+2}:{fq+3}], v[{p0}:{p0+1}], v[{p0+2}:{p0+3}]",
                  f"v_pk_add_f32 v[{fq}:{fq+1}], v[{fq}:{fq+1}], v[{ep+4}:{ep+5}]", f"v_pk_add_f32 v[{fq+2}:{fq+3}], v[{fq+2}:{fq+3}], v[{p0+4}:{p0+5}]",
                  f"v_pk_add_f32 v[{fq}:{fq+1}], v[{fq}:{fq+1}], v[{ep+6}:{ep+7}]", f"v_pk_add_f32 v[{fq+2}:{fq+3}], v[{fq+2}:{fq+3}], v[{p0+6}:{p0+7}]",
                  f"v_add_f32 v{sp}, v{fq}, v{fq+1}", f"v_add_f32 v{sp+1}, v{fq+2}, v{fq+3}")
            xlane_reduce(A, groups, "v_add_f32", lambda r: f"v_rcp_f32 v{r}, v{r}")
            for fq, hd, p0, ep, sp in items:
                for i in range(0, 8, 2):
                    A(f"v_pk_mul_f32 v[{ep+i}:{ep+i+1}], v[{ep+i}:{ep+i+1}], v[{sp}:{sp+1}] op_sel_hi:[1,0]")
                for i in range(0, 8, 2):
                    A(f"v_pk_mul_f32 v[{p0+i}:{p0+i+1}], v[{p0+i}:{p0+i+1}], v[{sp}:{sp+1}] op_sel:[0,1]")

    def rd2(n, t, nring):
        sl, u, par = t >> 2, (t >> 1) & 1, t & 1
        s_ = n % 8
        return [f"ds_read_b64_tr_b16 {ar(t, kk, h, nring)}, v{V_RD2 + 2*(s_ >> 1) + par} offset:{(s_ & 1)*4096 + h*2*WREG + (sl*2+kk)*1024 + u*512}"
                for kk in range(2) for h in range(2)]
    class P1:
        def __init__(s, vm, order, own, nw):
            s.vm = vm; s.order = order; s.own = own; s.nw = nw; s.na = len(own); s.alim = len(own)
            s.ring = {}; s.rnext = 0
        def wops(s, n):
            if n < NS1: return w2_ops(R_WD, tw(S_TQ + s.order[n]), n % 8, ("W", n))
            return w2_ops(R_WO, f"s_mov_b32 s11, {(n-NS1)*131072}", n % 8, ("W", n))
        def aops(s, n):
            b = RING[(n-1) % 5]; s.ring[n] = b
            if n < NS1:
                return [([], f"buffer_load_dwordx4 a[{b+4*f}:{b+4*f+3}], v{V_J + (f >> 1)}, s[{R_ACT}:{R_ACT+3}], s{S_TQ + s.order[n]} offen offset:{(f & 1)*1024} sc1", ("A", n)) for f in range(8)]
            o = []
            for f in range(8):
                pre = [f"s_mov_b32 s10, {(56 + (n-NS1)*4 + (f >> 1))*8192}"] if f % 2 == 0 else []
                o.append((pre, f"buffer_load_dwordx4 a[{b+4*f}:{b+4*f+3}], v{V_J}, s[{R_ACT}:{R_ACT+3}], s10 offen offset:{(f & 1)*1024} sc1", ("A", n)))
            return o
        def more_acts(s, cur, cap=99):
            o = []
            lo = max(cur, len(s.own))
            while s.na < s.alim and s.na < lo + 5 and cap > 0:
                o += s.aops(s.na); s.na += 1; cap -= 1
            return o
        def more_w(s, cur, wlim, cap=2):
            o = []
            while s.nw < min(NT, wlim) and s.nw <= cur - 1 + 8 and cap > 0:
                o += s.wops(s.nw); s.nw += 1; cap -= 1
            return o
        def emit(s, ops):
            for pre, ins, tag in ops:
                A(*pre); s.vm.issue(ins, tag)
        def bfrag(s, n, j, kk):
            if n < len(s.own): return q4('v', s.own[n][(j, kk)])
            return q4('a', s.ring[n] + (j*2+kk)*4)
        def stage(s, n):
            if C["fine"]: stamp(A, 20+n)
            ops = s.more_acts(n, 2) + s.more_w(n, C["ovl"] + 8)
            fill = {}
            pos = [9 + 2*((54*i//max(len(ops), 1))//2) for i in range(len(ops))]
            for i, o in zip(pos, ops): fill.setdefault(i, []).append(o)
            for t in range(8):
                if t == 0 and n >= len(s.own): A(s.vm.wait(("A", n)) + " lgkmcnt(4)")
                elif t == 1: A(s.vm.wait(("W", n+1)) + " lgkmcnt(4)", "s_barrier")
                else: A("s_waitcnt lgkmcnt(4)")
                r = rd2(n, t+2, 4) if t+2 < 8 else rd2(n+1, t+2-8, 4)
                seen = set()
                for q, (j, kk) in enumerate(snake(t)):
                    b = acc2(t, j)
                    c = "0" if (n == 0 and j not in seen) else f"v[{b}:{b+3}]"
                    seen.add(j)
                    A(f"v_mfma_f32_16x16x32_bf16 v[{b}:{b+3}], {ar(t, kk)}, {s.bfrag(n, j, kk)}, {c}")
                    if q % 2 == 0: A(r[q//2])
                    s.emit(fill.get(8*t+q, []))
    def wo_prefetch(vm):
        A("v_lshrrev_b32 v22, 1, v1", "v_lshlrev_b32 v22, 11, v22", "v_and_b32 v23, 1, v1", "v_lshl_add_u32 v22, v23, 7, v22", f"s_add_u32 s10, s79, {32*2048}")
        vm.issue(f"buffer_load_dword v0, v22, s[{R_WO}:{R_WO+3}], s79 offen offset:2048", "PF")
        vm.issue(f"buffer_load_dword v0, v22, s[{R_WO}:{R_WO+3}], s10 offen offset:2048", "PF")
    def o_poll(p):
        pollf(15, f"s{S_GL}", 0) if False else None
        A(f"s_add_u32 s11, s{S_GL}, {F_O}")
        pollf(15, "s11")
        p.alim = NS1 + 4

    A(f"s_cmp_eq_u32 s{S_TYPE}, 0", "s_cbranch_scc1 L_Q")
    vk = VM(A); vk.ops = list(vm.ops); hst = mk_store(vk)
    A("v_and_b32 v15, 15, v1", "v_bfe_u32 v16, v1, 1, 2", "v_lshrrev_b32 v30, 4, v1", "v_xor_b32 v16, v16, v30",
      "v_lshlrev_b32 v15, 6, v15", "v_lshl_add_u32 v15, v16, 4, v15", f"v_add_u32 v15, s{S_WR}, v15", f"v_add_u32 v15, {ST}, v15", f"v_add_u32 v16, {ST}, v15")
    for hd in range(2):
        for j in range(4): pack2(A, vq(12+2*hd, j), vq(12+2*hd, j), vq(13+2*hd, j))
    A("s_waitcnt vmcnt(0)")
    for hd in range(2):
        for j in range(4):
            q = vq(12+2*hd, j)
            A(f"ds_write_b128 v15, v[{q}:{q+3}] offset:{hd*4096 + j*1024}")
    for hd in range(2):
        for j in range(4): pack2(A, vq(8+2*hd, j), vq(8+2*hd, j), vq(9+2*hd, j))
    A("s_waitcnt lgkmcnt(0)")
    T12 = vq(12, 0)
    for hd in range(2):
        items = [(vq(8+2*hd, j), hd, T12+16*j, T12+16*j+8, 22+2*j) for j in range(4)]
        feat(items, True)
        if hd == 1: A("s_barrier")
        for j, (fq, _, p0, ep, sp) in enumerate(items):
            d0 = vq(9+2*hd, j)
            pack2(A, d0, ep, ep+4); pack2(A, fq, p0, p0+4)
            A(f"ds_write_b128 v16, v[{d0}:{d0+3}] offset:{hd*ST + j*1024}", f"ds_write_b128 v16, v[{fq}:{fq+3}] offset:{hd*ST + 4096 + j*1024}")
    A("v_lshrrev_b32 v22, 2, v1", "v_bfe_u32 v23, v1, 3, 2", "v_and_b32 v24, 3, v1", "v_xor_b32 v23, v23, v24",
      "v_lshlrev_b32 v22, 6, v22", "v_lshl_add_u32 v22, v23, 4, v22")
    A(f"s_lshr_b32 s96, s{S_W}, 1", f"s_mul_i32 s97, s96, {ST}", f"s_and_b32 s10, s{S_W}, 1", "s_lshl_b32 s10, s10, 12", "s_add_u32 s97, s97, s10", f"s_add_u32 s97, s97, {2*ST}",
      "s_lshl_b32 s96, s96, 12", f"s_add_u32 s96, s96, {ST}")
    A("v_add_u32 v23, s96, v22", "v_add_u32 v22, s97, v22")
    A("v_mov_b32 v24, 0x3f803f80", "v_mov_b32 v25, v24", "v_mov_b32 v26, v24", "v_mov_b32 v27, v24")
    A("s_waitcnt lgkmcnt(0)", "s_barrier")
    stamp(A, 7)
    KVA = T12
    def kvrd(kb):
        o = []
        b = 96 + kb*16
        for m, vr in ((0, 22), (1, 23)):
            for par in range(2):
                for h in range(2):
                    r = b + m*8 + par*4 + 2*h
                    o.append(f"ds_read_b64_tr_b16 a[{r}:{r+1}], v{vr} offset:{(kb >> 1)*WREG + (kb & 1)*2048 + h*1024 + 8*par}")
        return o
    A(*kvrd(0))
    for kb in range(8):
        if kb + 1 < 8: A(*kvrd(kb+1)); A("s_waitcnt lgkmcnt(8)")
        else: A("s_waitcnt lgkmcnt(0)", "s_barrier")
        b = 96 + kb*16
        for fp in range(2):
            for dp in range(2):
                d = KVA + (dp*2+fp)*4
                A(f"v_mfma_f32_16x16x32_bf16 v[{d}:{d+3}], a[{b+fp*4}:{b+fp*4+3}], a[{b+8+dp*4}:{b+8+dp*4+3}], " + ("0" if kb == 0 else f"v[{d}:{d+3}]"))
            d = KVA + 16 + fp*4
            A(f"v_mfma_f32_16x16x32_bf16 v[{d}:{d+3}], a[{b+fp*4}:{b+fp*4+3}], v[24:27], " + ("0" if kb == 0 else f"v[{d}:{d+3}]"))
    A(f"s_lshl_b32 s96, s{S_MB}, 12", f"s_lshl_b32 s97, s{S_MB}, 7", f"s_lshl_b32 s10, s{S_MB}, 2", "s_add_u32 s65, s65, s10")
    A("v_and_b32 v28, 48, v1")
    for q in range(4):
        vk.issue(f"buffer_store_dwordx4 v[{KVA+4*q}:{KVA+4*q+3}], v2, s[{R_KVP}:{R_KVP+3}], s96 offen offset:{q*1024} sc1", "KS")
    A("s_mov_b32 exec_lo, 0x00010001", "s_mov_b32 exec_hi, 0x00010001")
    for fp in range(2):
        vk.issue(f"buffer_store_dwordx4 v[{KVA+16+4*fp}:{KVA+19+4*fp}], v28, s[{R_ZP}:{R_ZP+3}], s97 offen offset:{fp*64} sc1", "KS")
    A("s_mov_b64 exec, -1")
    own_kv = [{(j, kk): 192 + (kk*4+j)*4 for j in range(4) for kk in range(2)}]
    pk = P1(vk, [8] + list(range(8)) + [9, 10, 11, 12, 13], own_kv, 2)
    glu(A, [(vq(16, j), vq(17, j), vq(18, j), vq(19, j), vq(18, j), (j, 0)) for j in range(2)], hst(S_ACTB))
    A(vk.wait("KS")); flag("s65")
    stamp(A, 8)
    pollf(3, "s67"); pk.alim = 9
    stamp(A, 9)
    pk.emit(pk.more_acts(0, 3))
    pk.emit(pk.more_w(0, 99, 3))
    glu(A, [(vq(16, j), vq(17, j), vq(18, j), vq(19, j), vq(18, j), (j, 0)) for j in range(2, 4)], hst(S_ACTB))
    T8 = vq(8, 0)
    for j in range(4): aread(T8+8*j, aq(4, j)); aread(T8+8*j+4, aq(5, j))
    glu(A, [(vq(0, j), vq(1, j), T8+8*j, T8+8*j+4, own_kv[0][(j, 0)], (j, 0)) for j in range(4)], hst(S_TW0))
    for j in range(4):
        b = T8 + 32 + 16*j
        aread(b, aq(2, j)); aread(b+4, aq(3, j)); aread(b+8, aq(6, j)); aread(b+12, aq(7, j))
    glu(A, [(T8+32+16*j, T8+36+16*j, T8+40+16*j, T8+44+16*j, own_kv[0][(j, 1)], (j, 1)) for j in range(4)], hst(S_TW0))
    A(*rd2(0, 0, 4)); A(*rd2(0, 1, 4))
    wo_prefetch(vk)
    stamp(A, 10)
    for n in range(NS1):
        if n == 1:
            A(vk.wait("HS"), f"s_add_u32 s11, s66, {F_H + 64}"); flag("s11")
        if n == 4:
            pollf(3, "s67", 64); pk.alim = NS1
        if n == C["ovl"]: o_poll(pk)
        pk.stage(n)
    A("s_branch L_P2")
    A("L_Q:")
    vqm = VM(A); vqm.ops = list(vm.ops); hst = mk_store(vqm)
    ownA = {(j, kk): (vq(17, j) if kk == 0 else vq(19, j)) for j in range(4) for kk in range(2)}
    ownB = {(j, kk): (vq(15, j) if kk == 0 else vq(14, j)) for j in range(4) for kk in range(2)}
    pq = P1(vqm, list(range(14)), [ownA, ownB], 6)
    glu(A, [(vq(8+2*u, j), vq(9+2*u, j), vq(12+2*u, j), vq(13+2*u, j), ownB[(j, u)], (j, u)) for u in (1, 0) for j in range(4)], hst(S_ACTB))
    for hd in range(2):
        for j in range(4): pack2(A, vq(16+2*hd, j), vq(16+2*hd, j), vq(17+2*hd, j))
    for j in range(4): aread(T8+8*j, aq(4, j)); aread(T8+8*j+4, aq(5, j))
    glu(A, [(vq(0, j), vq(1, j), T8+8*j, T8+8*j+4, ownA[(j, 0)], (j, 0)) for j in range(4)], hst(S_TW0))
    for j in range(4):
        b = T8 + 32 + 16*j
        aread(b, aq(2, j)); aread(b+4, aq(3, j)); aread(b+8, aq(6, j)); aread(b+12, aq(7, j))
    glu(A, [(T8+32+16*j, T8+36+16*j, T8+40+16*j, T8+44+16*j, ownA[(j, 1)], (j, 1)) for j in range(4)], hst(S_TW0))
    stamp(A, 7)
    def eq(hd, sg, j): return (64 if hd == 0 else 224) + (sg*4+j)*4
    for hd in range(2):
        items = [(vq(16+2*hd, j), hd, 32+16*j, 32+16*j+8, 22+2*j) for j in range(4)]
        feat(items, False)
        for j, (fq, _, p0, ep, sp) in enumerate(items):
            pack2(A, ep, ep, ep+4); pack2(A, p0, p0, p0+4)
            for r in range(4): A(f"v_accvgpr_write_b32 a{eq(hd, 0, j)+r}, v{ep+r}")
            for r in range(4): A(f"v_accvgpr_write_b32 a{eq(hd, 1, j)+r}, v{p0+r}")
        if hd == 0:
            A("s_waitcnt vmcnt(0)", f"s_add_u32 s11, s66, {F_H}"); flag("s11")
    A("s_barrier")
    A(*rd2(0, 0, 4)); A(*rd2(0, 1, 4))
    pq.emit(pq.more_w(0, 99, 2))
    wo_prefetch(vqm)
    stamp(A, 8)
    LB = 192
    def kv_batch(b):
        for m in range(4):
            A(f"s_mov_b32 s10, {(4*b+m)*4096}")
            for q in range(4):
                r = LB + m*16 + q*4
                vqm.issue(f"buffer_load_dwordx4 v[{r}:{r+3}], v2, s[{R_KVP}:{R_KVP+3}], s10 offen offset:{q*1024} sc1", ("KV", b))
    def ev_kv():
        stamp(A, 9)
        pollf(7, "s65")
        stamp(A, 10)
        vqm.issue(f"buffer_load_dwordx4 v[24:27], v2, s[{R_ZP}:{R_ZP+3}], 0 offen sc1", "Z")
        kv_batch(0)
    def ev_sum1():
        A(vqm.wait(("KV", 0)))
        for i in range(0, 16, 2): A(f"v_pk_add_f32 v[{FR+i}:{FR+i+1}], v[{LB+i}:{LB+i+1}], v[{LB+16+i}:{LB+16+i+1}]")
        for i in range(0, 16, 2): A(f"v_pk_add_f32 v[{FR+16+i}:{FR+16+i+1}], v[{LB+32+i}:{LB+32+i+1}], v[{LB+48+i}:{LB+48+i+1}]")
        kv_batch(1)
        for i in range(0, 16, 2): A(f"v_pk_add_f32 v[{FR+i}:{FR+i+1}], v[{FR+i}:{FR+i+1}], v[{FR+16+i}:{FR+16+i+1}]")
        for r in range(24, 28): A(f"v_add_f32_dpp v{r}, v{r}, v{r} row_ror:8 row_mask:0xf bank_mask:0xf")
        t = FR + 16
        for r in range(4): A(f"v_mov_b32 v{t+r}, v{24+r}")
        for r in range(4): A(f"v_permlane16_swap_b32 v{24+r}, v{t+r}")
        for r in range(4): A(f"v_add_f32 v{24+r}, v{24+r}, v{t+r}")
        for r in range(4): A(f"v_mov_b32 v{t+r}, v{24+r}")
        for r in range(4): A(f"v_permlane32_swap_b32 v{24+r}, v{t+r}")
        for r in range(4): A(f"v_add_f32 v{24+r}, v{24+r}, v{t+r}")
        A("v_and_b32 v22, 3, v1", "v_lshlrev_b32 v22, 4, v22", "v_bfe_u32 v23, v1, 2, 1", "v_lshl_add_u32 v22, v23, 3, v22",
          "v_and_b32 v23, 7, v1", "v_lshlrev_b32 v23, 3, v23", "v_add_u32 v23, 64, v23", "v_and_b32 v28, 8, v1", "v_cmp_eq_u32 vcc, 0, v28",
          "v_cndmask_b32 v22, v23, v22, vcc", f"v_add_u32 v22, s{S_WR}, v22")
        A("v_cvt_pk_bf16_f32 v24, v24, v25", "v_cvt_pk_bf16_f32 v25, v26, v27", "v_mov_b32 v26, 0x3f803f80",
          "v_cndmask_b32 v24, v26, v24, vcc", "v_cndmask_b32 v25, v26, v25, vcc")
        A(f"ds_write_b64 v22, v[24:25] offset:{ST + 8192}", "s_waitcnt lgkmcnt(0)")
    def ev_o():
        stamp(A, 11)
        A(vqm.wait(("KV", 1)))
        for m in range(4):
            for i in range(0, 16, 2): A(f"v_pk_add_f32 v[{FR+i}:{FR+i+1}], v[{FR+i}:{FR+i+1}], v[{LB+16*m+i}:{LB+16*m+i+1}]")
        A(f"v_add_u32 v22, s{S_WR}, v2")
        for dp in range(2):
            pack2(A, FR+16+4*dp, FR+8*dp, FR+8*dp+4)
            A(f"ds_write_b128 v22, v[{FR+16+4*dp}:{FR+19+4*dp}] offset:{8192 + dp*1024}")
        A("v_lshrrev_b32 v22, 4, v1", "v_lshlrev_b32 v22, 4, v22", "v_and_b32 v23, 3, v1", "v_cmp_eq_u32 vcc, 1, v23", "v_mov_b32 v23, 64",
          "v_cndmask_b32 v22, v22, v23, vcc", f"v_add_u32 v22, {ST}, v22")
        A(f"s_lshl_b32 s96, s{S_P}, 13", f"s_add_u32 s96, s96, {56*8192}", "s_mov_b32 s97, 0x358637bd")
        A("s_waitcnt lgkmcnt(0)", "s_barrier")
        FG = FR
        for wq in range(4):
            b = FG + wq*12
            A(f"ds_read_b128 v[{b}:{b+3}], v2 offset:{wq*WREG+8192}", f"ds_read_b128 v[{b+4}:{b+7}], v2 offset:{wq*WREG+8192+1024}",
              f"ds_read_b128 v[{b+8}:{b+11}], v22 offset:{wq*WREG+8192}")
        def mm(hd, j, o):
            for sg in range(2):
                b = FG + (hd*2+sg)*12
                e = q4('a', eq(hd, sg, j))
                A(f"v_mfma_f32_16x16x32_bf16 v[{o+16+4*sg}:{o+19+4*sg}], v[{b+8}:{b+11}], {e}, 0")
            for sg in range(2):
                b = FG + (hd*2+sg)*12
                e = q4('a', eq(hd, sg, j))
                for dp in range(2):
                    A(f"v_mfma_f32_16x16x32_bf16 v[{o+8*sg+4*dp}:{o+8*sg+4*dp+3}], v[{b+4*dp}:{b+4*dp+3}], {e}, 0")
        def fin(hd, j, o):
            zp = o+16; zm = o+20
            A(f"v_mul_f32 v{zp+2}, s97, v{zp+1}", f"v_add_f32 v{zp+2}, v{zp+2}, v{zp}", f"v_mul_f32 v{zp+2}, v{zp+2}, v{zm+1}",
              f"v_fmac_f32 v{zp+2}, v{zm}, v{zp+1}", f"v_rcp_f32 v{zp+2}, v{zp+2}")
            A(f"v_mul_f32 v{zm+2}, v{zm+1}, v{zp+2}", f"v_mul_f32 v{zm+3}, v{zp+1}, v{zp+2}")
            for i in range(0, 8, 2):
                A(f"v_pk_mul_f32 v[{o+i}:{o+i+1}], v[{o+i}:{o+i+1}], v[{zm+2}:{zm+3}] op_sel_hi:[1,0]")
            for i in range(0, 8, 2):
                A(f"v_pk_fma_f32 v[{o+i}:{o+i+1}], v[{o+8+i}:{o+8+i+1}], v[{zm+2}:{zm+3}], v[{o+i}:{o+i+1}] op_sel:[0,1,0]")
            pack2(A, 24, o, o+4)
            vqm.issue(f"buffer_store_dwordx4 v[24:27], v{V_J+j}, s[{R_ACT}:{R_ACT+3}], s96 offen offset:{hd*1024} sc1", "OS")
        A("s_waitcnt lgkmcnt(0)")
        seq = [(hd, j) for hd in range(2) for j in range(4)]
        mm(*seq[0], 208)
        for i, (hd, j) in enumerate(seq):
            if i + 1 < 8: mm(*seq[i+1], 208 + 24*((i+1) & 1))
            fin(hd, j, 208 + 24*(i & 1))
        stamp(A, 12)
    for n in range(NS1):
        if n == C["q_pollq"]:
            pollf(3, "s67"); pq.alim = 8
            pq.emit(pq.more_acts(n, 2))
        if n == C["q_kv"]: ev_kv()
        if n == C["q_sum1"]: ev_sum1()
        if n == C["q_o"]: ev_o()
        if n == C["q_pollkv"]:
            pollf(3, "s67", 64); pq.alim = NS1
            A(f"s_add_u32 s11, s66, {F_O}"); flag("s11")
        if n == C["ovl"]: o_poll(pq)
        pq.stage(n)
    A("L_P2:")
    stamp(A, 13)
    assert pq.nw == pk.nw and pq.na == pk.na, (pq.nw, pk.nw, pq.na, pk.na)
    ringq = [pq.ring.get(n) for n in range(NS1, NS1+4)]; ringk = [pk.ring.get(n) for n in range(NS1, NS1+4)]
    assert ringq == ringk, (ringq, ringk)
    k = 0
    while k < min(len(vqm.ops), len(vk.ops)) and vqm.ops[-1-k] == vk.ops[-1-k]: k += 1
    v2m = VM(A); suffix = vqm.ops[len(vqm.ops)-k:]
    older = [t for t in set(vqm.ops) | set(vk.ops)]
    v2m.ops = older + suffix
    class VM2(VM):
        def count_after(s, tags):
            return min(VM.count_after(s, tags), len(s.ops) - len(older))
    v2m.__class__ = VM2
    p = pq; p.vm = v2m
    A(f"s_lshl_b32 s96, s{S_MB}, 3", "s_lshr_b32 s97, s8, 8", "s_add_u32 s96, s96, s97", "s_lshl_b32 s97, s96, 18", f"s_lshl_b32 s10, s{S_W}, 12", "s_add_u32 s97, s97, s10", f"s_add_u32 s97, s97, {WS_PART}")
    srd_off(A, R_PS, 12, "s97", 1 << 18)
    A("s_lshl_b32 s96, s96, 2", f"s_add_u32 s96, s96, s{S_W}", "s_lshl_b32 s96, s96, 7", f"s_add_u32 s68, s96, {F_P}")
    for j in range(1, 4):
        A(f"s_xor_b32 s10, s{S_KS}, {j}", "s_lshl_b32 s10, s10, 16", f"s_lshl_b32 s11, s{S_KS}, 14", "s_add_u32 s10, s10, s11")
        for tp in range(4):
            d = acc2(2*tp, j)
            pack2(A, d, d, acc2(2*tp+1, j))
            v2m.issue(f"buffer_store_dwordx4 v[{d}:{d+3}], v2, s[{R_PS}:{R_PS+3}], s10 offen offset:{tp*1024} sc1", "PS")
    A("s_lshl_b32 s96, s9, 17", f"s_lshl_b32 s97, s{S_KS}, 15", "s_add_u32 s96, s96, s97", "s_add_u32 s96, s96, s8", f"s_sub_u32 s97, {4*MB}, s96")
    srd_off(A, R_XR, 4, "s96", "s97")
    srd_off(A, R_OUT, 98, "s96", "s97")
    A(f"v_and_b32 v{V_OUT}, 15, v1", f"v_lshlrev_b32 v{V_OUT}, 11, v{V_OUT}", "v_lshrrev_b32 v22, 4, v1", f"v_lshl_add_u32 v{V_OUT}, v22, 3, v{V_OUT}")
    A(*rd2(NS1, 2, 8))
    for n in range(NS1, NT):
        ops = p.more_acts(NS1, 1) + p.more_w(n, NT, 2)
        m = n - NS1
        if n == NS1 + 1:
            ops += [([], f"buffer_load_dwordx2 v[{XR+2*t}:{XR+2*t+1}], v{V_OUT}, s[{R_XR}:{R_XR+3}], 0 offen offset:{32*t}", "XR") for t in range(8)]
        if n == C["flag_stage"]:
            A(v2m.wait("PS"), f"s_lshl_b32 s11, s{S_KS}, 2", "s_add_u32 s11, s11, s68"); flag("s11"); v2m.ops.append("FL")
            stamp(A, 14)
        if n == C["poll_stage"]:
            stamp(A, 15)
            pollf(3, "s68")
            stamp(A, 16)
            for j in range(1, 4):
                A(f"s_xor_b32 s10, s{S_KS}, {j}", "s_lshl_b32 s10, s10, 14", f"s_lshl_b32 s11, s{S_KS}, 16", "s_add_u32 s10, s10, s11")
                for tp in range(4):
                    d = PL + (j-1)*16 + tp*4
                    v2m.issue(f"buffer_load_dwordx4 v[{d}:{d+3}], v2, s[{R_PS}:{R_PS+3}], s10 offen offset:{tp*1024} sc1", "PL")
        per = (len(ops) + 6)//7
        if C["fine"]: stamp(A, 20+n)
        for t in range(8):
            last = (n == NT-1)
            nxt = (n, t+3) if t+3 < 8 else (n+1, t+3-8)
            rem = 8 if not last else min(8, 4*(7-t))
            if t == 0 and m % 4 == 0: A(v2m.wait(("A", NS1 + m//4)) + f" lgkmcnt({rem})")
            elif t == 1 and not last: A(v2m.wait(("W", n+1)) + f" lgkmcnt({rem})", "s_barrier")
            else: A(f"s_waitcnt lgkmcnt({rem})")
            r = rd2(*nxt, 8) if nxt[0] < NT else [""]*4
            b = sacc(t)
            for kk in range(2):
                c = "0" if (m == 0 and kk == 0) else f"v[{b}:{b+3}]"
                A(f"v_mfma_f32_16x16x32_bf16 v[{b}:{b+3}], {ar(t, kk, None, 8)}, {q4('a', p.ring[NS1 + m//4] + ((m % 4)*2+kk)*4)}, {c}")
                A(r[2*kk], r[2*kk+1])
            if t >= 1:
                p.emit(ops[:per]); ops = ops[per:]
        assert not ops
    stamp(A, 17)
    A("s_waitcnt vmcnt(0)", "s_mov_b32 s97, 0xffff0000")
    for tp in range(4):
        for hf in range(2):
            t = 2*tp + hf; d = acc2(t, 0); tm = acc2(t, 1)
            for j in range(3):
                pp = PL + j*16 + tp*4 + hf*2
                A(f"v_lshlrev_b32 v{tm}, 16, v{pp}", f"v_and_b32 v{tm+1}, s97, v{pp}", f"v_lshlrev_b32 v{tm+2}, 16, v{pp+1}", f"v_and_b32 v{tm+3}, s97, v{pp+1}")
                A(f"v_pk_add_f32 v[{d}:{d+1}], v[{d}:{d+1}], v[{tm}:{tm+1}]", f"v_pk_add_f32 v[{d+2}:{d+3}], v[{d+2}:{d+3}], v[{tm+2}:{tm+3}]")
            e = acc2(t, 2); x = acc2(t, 3); sa = sacc(t)
            A(f"v_pk_mul_f32 v[{e}:{e+1}], v[{d}:{d+1}], s[{S_NL}:{S_NL+1}] op_sel_hi:[1,0]", f"v_pk_mul_f32 v[{e+2}:{e+3}], v[{d+2}:{d+3}], s[{S_NL}:{S_NL+1}] op_sel_hi:[1,0]")
            for r in range(4): A(f"v_exp_f32 v{e+r}, v{e+r}")
            A(f"v_pk_mul_f32 v[{d}:{d+1}], v[{d}:{d+1}], v[{sa}:{sa+1}]", f"v_pk_mul_f32 v[{d+2}:{d+3}], v[{d+2}:{d+3}], v[{sa+2}:{sa+3}]")
            A(f"v_pk_add_f32 v[{e}:{e+1}], v[{e}:{e+1}], 1.0 op_sel_hi:[1,0]", f"v_pk_add_f32 v[{e+2}:{e+3}], v[{e+2}:{e+3}], 1.0 op_sel_hi:[1,0]")
            for r in range(4): A(f"v_rcp_f32 v{e+r}, v{e+r}")
            pp = XR + 2*t
            A(f"v_lshlrev_b32 v{x}, 16, v{pp}", f"v_and_b32 v{x+1}, s97, v{pp}", f"v_lshlrev_b32 v{x+2}, 16, v{pp+1}", f"v_and_b32 v{x+3}, s97, v{pp+1}")
            A(f"v_pk_fma_f32 v[{d}:{d+1}], v[{d}:{d+1}], v[{e}:{e+1}], v[{x}:{x+1}]", f"v_pk_fma_f32 v[{d+2}:{d+3}], v[{d+2}:{d+3}], v[{e+2}:{e+3}], v[{x+2}:{x+3}]")
            A(f"v_cvt_pk_bf16_f32 v{d}, v{d}, v{d+1}", f"v_cvt_pk_bf16_f32 v{d+1}, v{d+2}, v{d+3}")
            A(f"buffer_store_dwordx2 v[{d}:{d+1}], v{V_OUT}, s[{R_OUT}:{R_OUT+3}], 0 offen offset:{32*t}" + ("", " sc1", " nt", " sc0 sc1")[C["osc"]])
    A(f"s_or_b32 s10, s2, s{S_W}", "s_cmp_lg_u32 s10, 0", "s_cbranch_scc1 L_nogen", f"s_mov_b32 s10, {F_GEN}")
    flag("s10")
    A("L_nogen:")
    if PROF2:
        A("s_waitcnt vmcnt(0)"); stamp(A, 18)
        A(f"s_load_dwordx2 s[20:21], s[0:1], {KA_DBG}", "s_mov_b32 s22, 64", "s_mov_b32 s23, 0x20000", "s_waitcnt lgkmcnt(0)")
        A("v_lshlrev_b32 v2, 2, v1", "buffer_atomic_umax v31, v2, s[20:23], 0 offen sc1")
    elif PROF:
        A("s_waitcnt vmcnt(0)"); stamp(A, 18)
        A("s_lshl_b32 s10, s2, 2", f"s_add_u32 s10, s10, s{S_W}", "s_lshl_b32 s10, s10, 8", f"s_add_u32 s10, s10, {WS_PROF}")
        srd_off(A, 20, 12, "s10", 256)
        A("v_lshlrev_b32 v2, 2, v1", "buffer_store_dword v31, v2, s[20:23], 0 offen")
    A("L_end:", "s_endpgm")
    body = A.finish()
    ref = open(f"cdna_kernels/{NAME}.s.ref").read()
    head = [l for l in ref.splitlines() if l.startswith(";") and "@launch" not in l and "Override" not in l and "grid=ceil" not in l][:12]
    txt = "\n".join(head) + "\n; @launch grid=(256,1,1) block=(256,1,1) lds=163840\n" + '.amdgcn_target "amdgcn-amd-amdhsa--gfx950"\n' + body + descriptor(name, 512, 256)
    return txt

if __name__ == "__main__":
    out = sys.argv[1] if len(sys.argv) > 1 else f"cdna_kernels/{NAME}.s"
    cfg = {}
    for a_ in sys.argv[2:]:
        k, v_ = a_.split("="); cfg[k] = int(v_)
    t = gen(cfg)
    open(out, "w").write(t)
    import subprocess
    r = subprocess.run(["clang", "-x", "assembler", "-target", "amdgcn-amd-amdhsa", "-mcpu=gfx950", "-c", out, "-o", "x.o"], capture_output=True, text=True)
    if r.returncode: print("ASM ERROR", r.stderr[:1500]); sys.exit(1)
    print("wrote", out, len(t), os.path.getsize("x.o"))
```
